```python
import torch

def _softmax(x, axis=-1):
    return torch.softmax(x, dim=axis)

def _gelu(x):
    return torch.nn.functional.gelu(x, approximate='tanh')

def _silu(x):
    return torch.nn.functional.silu(x)

def _sigmoid(x):
    return torch.sigmoid(x)

def _layernorm(x, axis=-1, eps=1e-05):
    m = x.mean(dim=axis, keepdim=True)
    v = x.var(dim=axis, keepdim=True, unbiased=False)
    return (x - m) / torch.sqrt(v + eps)

def _scatter_add(tgt, idx, src, axis=0):
    return tgt.clone().index_add_(axis, idx, src)

def _segment_sum(src, seg, n):
    out = torch.zeros((n,) + src.shape[1:], dtype=src.dtype)
    return out.index_add_(0, seg, src)

def _pad(x, pw):
    flat = tuple((v for pair in reversed(pw) for v in pair))
    return torch.nn.functional.pad(x, flat)
kernel_name = 'gated_mix__memory_aug_recurrent_mem_tr__dense_activation_silu__prompt'

def setup_inputs():

    _w = lambda a: (lambda t: t.to(torch.bfloat16) if t.is_floating_point() else t)(torch.as_tensor(a))

    def _A_setup():
        B, S, Dm = (1, 2048, 1024)
        H, Dh = (32, 128)
        M, seg = (8, 32)
        seg = min(seg, S)
        S = S // seg * seg
        return {'x': _w((lambda *s: torch.randn(*s, dtype=torch.bfloat16) * 0.1)(B, S, Dm)), 'mem0': _w((lambda *s: torch.randn(*s, dtype=torch.bfloat16) * 0.8)(B, M, Dm)), 'Wq': _w((lambda *s: torch.randn(*s, dtype=torch.bfloat16) * 6.4)(Dm, H, Dh) * Dm ** (-0.5)), 'Wk': _w((lambda *s: torch.randn(*s, dtype=torch.bfloat16) * 6.4)(Dm, H, Dh) * Dm ** (-0.5)), 'Wv': _w((lambda *s: torch.randn(*s, dtype=torch.bfloat16) * 0.8)(Dm, H, Dh) * Dm ** (-0.5)), 'Wo': _w((lambda *s: torch.randn(*s, dtype=torch.bfloat16) * 0.8)(H, Dh, Dm) * (H * Dh) ** (-0.5)), 'seg_len': seg}
    _A_in = _A_setup()

    def _B_setup():
        B, S, D, F = (1, 2048, 1024, 3584)
        return {'x': _w((lambda *s: torch.randn(*s, dtype=torch.bfloat16) * 0.1)(B, S, D)), 'w1': _w((lambda *s: torch.randn(*s, dtype=torch.bfloat16) * 3.2)(D, F) * D ** (-0.5)), 'w2': _w((lambda *s: torch.randn(*s, dtype=torch.bfloat16) * 3.2)(F, D) * F ** (-0.5))}
    _B_in = _B_setup()
    return {'A_x': _A_in['x'], 'A_mem0': _A_in['mem0'], 'A_Wq': _A_in['Wq'], 'A_Wk': _A_in['Wk'], 'A_Wv': _A_in['Wv'], 'A_Wo': _A_in['Wo'], 'A_seg_len': _A_in['seg_len'], 'B_x': _B_in['x'], 'B_w1': _B_in['w1'], 'B_w2': _B_in['w2'], 'gate_w': _w((lambda *s: torch.randn(*s, dtype=torch.bfloat16) * 0.1)(1024) * 16.0)}

def reference(A_x, A_mem0, A_Wq, A_Wk, A_Wv, A_Wo, A_seg_len, B_x, B_w1, B_w2, gate_w):

    def _A_ref(x, mem0, Wq, Wk, Wv, Wo, seg_len):
        B, S, Dm = x.shape
        H, Dh = (Wq.shape[1], Wq.shape[2])
        M = mem0.shape[1]
        scale = Dh ** (-0.5)
        n_seg = S // seg_len
        L = M + seg_len
        idx = torch.arange(L)
        mask = (idx[:, None] < M) | (idx[:, None] >= idx[None, :])
        mem = mem0
        outs = []
        for s in range(n_seg):
            xs = x[:, s * seg_len:(s + 1) * seg_len, :].clone()
            h = torch.concatenate([mem, xs], axis=1)
            q = torch.einsum('btd,dhe->bhte', h, Wq)
            k = torch.einsum('btd,dhe->bhte', h, Wk)
            v = torch.einsum('btd,dhe->bhte', h, Wv)
            scores = torch.einsum('bhqe,bhke->bhqk', q, k) * scale
            scores = torch.where(mask[None, None], scores, -1000000000.0)
            p = _softmax(scores, axis=-1)
            o = torch.einsum('bhqk,bhke->bhqe', p, v)
            o = torch.einsum('bhte,hed->btd', o, Wo)
            mem = o[:, :M, :].clone()
            outs.append(o[:, M:, :])
        return torch.concatenate(outs, axis=1)

    def _B_ref(x, w1, w2):
        h = torch.einsum('bsd,df->bsf', x, w1)
        h = _silu(h)
        out = torch.einsum('bsf,fd->bsd', h, w2)
        return out
    x = A_x
    g = _sigmoid((x * gate_w).sum(-1, keepdims=True))
    a = _A_ref(x, A_mem0, A_Wq, A_Wk, A_Wv, A_Wo, A_seg_len)
    b = _B_ref(x, B_w1, B_w2)
    return g * a + (1 - g) * b
```

```python
class R:
    def __init__(self, kind, base, n=1):
        self.kind, self.base, self.n = kind, base, n
    def __str__(self):
        if self.n == 1:
            return f"{self.kind}{self.base}"
        return f"{self.kind}[{self.base}:{self.base + self.n - 1}]"
    __repr__ = __str__
    def __getitem__(self, i):
        if isinstance(i, slice):
            a = i.start or 0
            b = self.n if i.stop is None else i.stop
            assert 0 <= a < b <= self.n, (a, b, self.n)
            return R(self.kind, self.base + a, b - a)
        assert 0 <= i < self.n, (i, self.n)
        return R(self.kind, self.base + i, 1)
    def sub(self, off, n):
        return self[off:off + n]

class Pool:
    def __init__(self, kind, lo, hi):
        self.kind, self.lo, self.hi = kind, lo, hi
        self.used = {}
        self.high = lo
    def alloc(self, n=1, align=None, name=None):
        if align is None:
            align = 1 if n == 1 else (2 if self.kind != 's' else (2 if n == 2 else 4))
        b = self.lo
        while True:
            b = (b + align - 1) // align * align
            if b + n > self.hi:
                raise RuntimeError(f"out of {self.kind} registers allocating {name} x{n}")
            clash = [i for i in range(b, b + n) if i in self.used]
            if not clash:
                break
            b = clash[-1] + 1
        for i in range(b, b + n):
            self.used[i] = name
        self.high = max(self.high, b + n)
        return R(self.kind, b, n)
    def fix(self, base, n=1, name=None):
        for i in range(base, base + n):
            assert i not in self.used, (self.kind, i, self.used.get(i))
            self.used[i] = name
        self.high = max(self.high, base + n)
        return R(self.kind, base, n)
    def free(self, *rs):
        for r in rs:
            for i in range(r.base, r.base + r.n):
                del self.used[i]
    def snapshot(self):
        return dict(self.used)
    def restore(self, snap):
        self.used = dict(snap)

class Asm:
    def __init__(self):
        self.lines = []
        self._n = 0
    def __call__(self, s):
        for l in s.split('\n'):
            l = l.strip()
            if l:
                self.lines.append(l if l.endswith(':') else '  ' + l)
    def c(self, s):
        self.lines.append('  ; ' + s)
    def label(self, name):
        self.lines.append(name + ':')
    def newlabel(self, p='L'):
        self._n += 1
        return f"{p}_{self._n}"
    def nop(self, n):
        while n > 0:
            k = min(n, 16)
            self.lines.append(f"  s_nop {k - 1}")
            n -= k
    def text(self):
        return '\n'.join(self.lines) + '\n'

def interleave(main, fillers, every=1, start=0):
    out = []
    fi = 0
    for i, m in enumerate(main):
        out.append(m)
        if i >= start and (i - start) % every == 0 and fi < len(fillers):
            out.append(fillers[fi]); fi += 1
    out.extend(fillers[fi:])
    return out

KNAME = 'gated_mix__memory_aug_recurrent_mem_tr__dense_activation_silu__prompt_kernel'

def wrap(body, header_lines, lds, grid=256, block=256, vgpr=512, accum=256, sgpr=102):
    h = '\n'.join('; ' + x for x in header_lines)
    return f"""{h}
; @launch grid=({grid},1,1) block=({block},1,1) lds={lds}
.amdgcn_target "amdgcn-amd-amdhsa--gfx950"
.text
.globl {KNAME}
.p2align 8
.type {KNAME},@function
{KNAME}:
{body}
.section .rodata,"a"
.p2align 6
.amdhsa_kernel {KNAME}
  .amdhsa_next_free_vgpr {vgpr}
  .amdhsa_next_free_sgpr {sgpr}
  .amdhsa_accum_offset {accum}
  .amdhsa_group_segment_fixed_size 0
  .amdhsa_kernarg_size 112
  .amdhsa_user_sgpr_count 2
  .amdhsa_user_sgpr_kernarg_segment_ptr 1
  .amdhsa_system_sgpr_workgroup_id_x 1
  .amdhsa_float_denorm_mode_32 3
.end_amdhsa_kernel
"""
```

```python
from common import *
STG=131072; KXL=147456; QL=155648; KML=157696; RED=147456
sJ='s40'; sH='s41'; sLB='s42'; sS='s43'; sSl0='s44'; sSl1='s45'; sSl2='s46'; sO1='s47'; sO2='s48'; sO3='s49'
sFlag='s50'; sDone='s51'; sNeed='s52'; sC1='s53'; sXme='s54'; sXpeer='s55'; sWo='s56'; sKV='s57'; sP='s58'; sXW='s59'
sLo='s[60:61]'; sOdd='s[62:63]'
vMemLd='v2'; vLdsW='v3'; vLdsR='v4'; vIdx='v7'; vt0='v8'; vt1='v9'; vt2='v10'; vWl=['v11','v12']
SENT=R('v',20,4); ACC=R('v',28,16); AF=R('v',44,12); WS=R('v',56,32); D=R('v',88,32)

def lane_parts(a, c,g,m,hf):
    a(f"v_and_b32 {c}, 15, {vL}\nv_lshrrev_b32 {g}, 4, {vL}\nv_and_b32 {m}, 7, {vL}\nv_bfe_u32 {hf}, {vL}, 3, 1")
def perm_g(a, dst, g, t):
    a(f"v_lshrrev_b32 {t}, 1, {g}\nv_and_b32 {dst}, 1, {g}\nv_lshl_or_b32 {dst}, {dst}, 1, {t}")

def common_setup(a):
    a(f"""s_and_b32 {sJ}, {sT}, 15
s_lshl_b32 {sH}, {sX}, 4
s_add_u32 {sH}, {sH}, {sJ}
s_lshl_b32 {sLB}, {sX}, 20
s_add_u32 {sLB}, {sLB}, {LOC0}""")
    c,g,m,hf='v120','v121','v122','v123'
    lane_parts(a,c,g,m,hf)
    a(f"""v_lshlrev_b32 {vt0}, 5, {m}
v_lshl_add_u32 {vt0}, {g}, 8, {vt0}
v_lshl_add_u32 {vt0}, {hf}, 4, {vt0}
s_lshl_b32 {sT0}, {sW}, 10
s_add_u32 {sT1}, {sT0}, {sLB}
v_add_u32 {vMemLd}, {sT1}, {vt0}
v_lshlrev_b32 {vt0}, 4, {vL}
v_add_u32 {vLdsR}, {STG}, {vt0}
v_add_u32 {vLdsW}, {sT0}, {vLdsR}
v_mov_b32 {vIdx}, 0x44444444
v_mov_b32 {vt1}, 0xeeeeeeee
v_cmp_eq_u32 vcc, 1, {hf}
v_cndmask_b32 {vIdx}, {vIdx}, {vt1}, vcc
v_cmp_eq_u32 {sLo}, 0, {hf}
v_and_b32 {vt1}, 1, {vL}
v_cmp_eq_u32 {sOdd}, 1, {vt1}""")
    for i in range(4): a(f"v_mov_b32 {SENT[i]}, -1")
    return c,g,m,hf

def chunk_pipe(a, chunks, after_first):
    n=len(chunks)
    for cc in range(min(4,n)): chunks[cc][0](cc%4)
    for cc in range(n):
        later=min(cc+3,n-1)-cc
        a(f"s_waitcnt vmcnt({8*later})\ns_barrier")
        if cc==0: after_first()
        chunks[cc][1](cc%4)
        a("s_waitcnt lgkmcnt(0)\ns_barrier")
        if chunks[cc][2]: chunks[cc][2](cc%4)
        if cc+4<n: chunks[cc+4][0](cc%4)

def w256_voffs(a, dst4):
    a(f"""v_lshrrev_b32 {vt0}, 4, {vL}
v_and_b32 {vt1}, 15, {vL}
v_and_b32 {vt2}, 1, {vt0}
v_lshlrev_b32 {vt2}, 1, {vt2}
v_xor_b32 {vt1}, {vt1}, {vt2}
v_lshlrev_b32 {vt0}, 13, {vt0}
v_lshl_add_u32 {dst4[0]}, {vt1}, 4, {vt0}""")
    for nn in range(1,4): a(f"v_xor_b32 {dst4[nn]}, {(((nn&1)<<2)|((nn>>1)<<3))<<4}, {dst4[0]}")

def tr_lane(a, gB, r, qq):
    a(f"v_lshrrev_b32 {gB}, 4, {vL}\nv_bfe_u32 {r}, {vL}, 2, 2\nv_and_b32 {qq}, 3, {vL}")

def tr256_base(a, dst, natural):
    gB,r,qq='v120','v121','v122'; t='v123'; u='v124'; f='v125'
    tr_lane(a,gB,r,qq)
    a(f"""v_lshrrev_b32 {t}, 1, {gB}
v_lshlrev_b32 {u}, 4, {t}
v_lshrrev_b32 {t}, 1, {r}
v_lshl_add_u32 {u}, {t}, 3, {u}
v_lshlrev_b32 {f}, 2, {t}
v_and_b32 {t}, 1, {gB}
v_lshl_add_u32 {u}, {t}, 2, {u}
v_lshl_add_u32 {f}, {t}, 1, {f}
v_and_b32 {t}, 1, {r}
v_add_u32 {u}, {u}, {t}
v_add_u32 {f}, {f}, {t}
v_lshlrev_b32 {u}, 8, {u}
v_lshlrev_b32 {f}, 1, {f}
s_lshl_b32 {sT0}, {sW}, 2""")
    if natural: a(f"v_lshrrev_b32 {t}, 1, {qq}\nv_add_u32 {t}, {sT0}, {t}\nv_xor_b32 {t}, {t}, {f}\nv_lshl_add_u32 {u}, {t}, 4, {u}\nv_and_b32 {t}, 1, {qq}\nv_lshl_add_u32 {dst}, {t}, 3, {u}")
    else:       a(f"v_add_u32 {t}, {sT0}, {qq}\nv_xor_b32 {t}, {t}, {f}\nv_lshl_add_u32 {dst}, {t}, 4, {u}")

def gather_mem(a):
    a(f"s_lshl_b32 {sO1}, {sSl0}, 14\ns_add_u32 {sO2}, {sO1}, 4096\ns_add_u32 {sO3}, {sO1}, 8192\ns_add_u32 {sT2}, {sO1}, 12288")
    so=[sO1,sO2,sO3,sT2]
    a.poll_data([f"buffer_load_dwordx4 {D.sub(4*i,4)}, {vMemLd}, {sWS}, {so[i]} offen sc1" for i in range(4)], [D[i] for i in range(16)], vt0)
    for i in range(4): a(f"ds_write_b128 {vLdsW}, {D.sub(4*i,4)} offset:{i*4096}")
    a("s_waitcnt lgkmcnt(0)\ns_barrier")

def swap_add(a, T, s0, s1):
    a(f"v_permlane32_swap_b32 {T[0]}, {T[2]}\nv_permlane32_swap_b32 {T[1]}, {T[3]}\nv_add_f32 {s0}, {T[0]}, {T[2]}\nv_add_f32 {s1}, {T[1]}, {T[3]}")

def rotate(a):
    a(f"s_mov_b32 {sT0}, {sSl0}\ns_mov_b32 {sSl0}, {sSl1}\ns_mov_b32 {sSl1}, {sSl2}\ns_mov_b32 {sSl2}, {sT0}\ns_add_u32 {sS}, {sS}, 1")

def dump_stamps(a, ST, regs):
    if not ST: return
    a(f"""s_lshl_b32 {sT0}, {sX}, 5
s_add_u32 {sT0}, {sT0}, {sT}
s_lshl_b32 {sT0}, {sT0}, 12
s_lshl_b32 {sT1}, {sW}, 10
s_add_u32 {sT0}, {sT0}, {sT1}
s_add_u32 {sT0}, {sT0}, {STAMPS}
v_lshlrev_b32 {vt0}, 4, {vL}""")
    for i,r in enumerate(regs): a(f"v_mov_b32 {WS[i]}, {r}")
    a(f"buffer_store_dwordx4 {WS.sub(0,4)}, {vt0}, {sWS}, {sT0} offen\ns_waitcnt vmcnt(0)")

def role_qk(a, ST=False):
    a.label("L_role_QK")
    vPubO='v5'; vVmLd='v6'; vQw='v13'; vKw='v14'; vQr='v15'; vKr='v16'; vLin='v17'; vKxR='v18'; vFl='v19'
    ONE=R('v',24,4); VXf=R('v',104,8); VMf=R('v',112,2); BX=R('v',114,4); BM=[R('v',118,2),R('v',120,2)]; MX='v122'; RC='v123'; vt3='v124'
    def Wq(ks,t):
        if ks<8: return R('a',ks*32+t*8,8)
        if ks<12: return R('v',128+(ks-8)*32+t*8,8)
        return WS.sub(t*8,8)
    SR=['v0','v125','v126','v127']; st=lambda i: a.stamp(i, ST, SR)
    a.srd(sB,'Wq'); a.srd(sC,'Wk')
    c,g,m,hf=common_setup(a)
    a(f"""s_lshl_b32 {sFlag}, {sH}, 7
s_add_u32 {sFlag}, {sFlag}, {FL(F_KM)}
v_lshlrev_b32 {vt0}, 7, {g}
v_lshl_add_u32 {vt0}, {m}, 4, {vt0}
s_lshl_b32 {sT0}, {sJ}, 11
s_lshl_b32 {sT1}, {sW}, 9
s_add_u32 {sT0}, {sT0}, {sT1}
s_add_u32 {sT0}, {sT0}, {sLB}
s_add_u32 {sT1}, {sT0}, {OBO}
v_add_u32 {vPubO}, {sT1}, {vt0}
s_add_u32 {sT1}, {sT0}, {VMBO}
v_lshlrev_b32 {vt0}, 3, {vL}
v_add_u32 {vVmLd}, {sT1}, {vt0}
v_lshlrev_b32 {vLin}, 4, {vL}
v_add_u32 {vKxR}, {KXL}, {vLin}
s_lshl_b32 {sT0}, {sW}, 13
v_add_u32 {vWl[0]}, {sT0}, {vLin}
v_add_u32 {vWl[1]}, 0x10000, {vWl[0]}""")
    perm_g(a, vt1, g, vt0)
    a(f"""s_lshl_b32 {sT0}, {sW}, 5
v_add_u32 {vt0}, {sT0}, {c}
v_lshlrev_b32 {vQw}, 4, {vt0}
v_lshl_add_u32 {vQw}, {vt1}, 2, {vQw}
v_add_u32 {vQw}, {QL}, {vQw}
v_lshlrev_b32 {vKw}, 5, {vt0}
v_lshl_add_u32 {vKw}, {vt1}, 3, {vKw}
v_add_u32 {vKw}, {KML}, {vKw}
v_bfe_u32 {vt0}, {vL}, 2, 2
v_lshl_add_u32 {vt0}, {g}, 3, {vt0}
v_and_b32 {vt1}, 1, {vL}
v_lshlrev_b32 {vQr}, 4, {vt0}
v_lshl_add_u32 {vQr}, {vt1}, 3, {vQr}
v_add_u32 {vQr}, {QL}, {vQr}
v_and_b32 {vt1}, 3, {vL}
v_lshlrev_b32 {vKr}, 5, {vt0}
v_lshl_add_u32 {vKr}, {vt1}, 3, {vKr}
v_add_u32 {vKr}, {KML}, {vKr}
v_and_b32 {vt0}, 1, {vL}
v_lshlrev_b32 {vt0}, 12, {vt0}
s_lshl_b32 {sT0}, {sH}, 7
v_add_u32 {vFl}, {sT0}, {vt0}
s_mov_b32 {sC1}, 0x3e0293ee
s_lshl_b32 {sKV}, {sH}, 13
s_lshl_b32 {sT0}, {sW}, 11
s_add_u32 {sKV}, {sKV}, {sT0}""")
    for i in range(4): a(f"v_mov_b32 {ONE[i]}, 0x3f803f80")
    a.wave0(lambda: a.set_flag(sFlag, 0, vt0, vt1))
    a(f"s_mov_b64 {sEX}, exec\ns_mov_b64 exec, {sLo}")
    for k in range(3): a(f"s_mov_b32 {sT0}, {k*0x8000}\nbuffer_store_dwordx4 {SENT}, {vPubO}, {sWS}, {sT0} offen")
    a(f"s_mov_b64 exec, {sEX}")
    VO4=[D[i] for i in range(4)]; TB=[D[4],D[5],D[6],D[7]]
    w256_voffs(a, VO4)
    tr256_base(a, TB[0], True)
    a(f"v_xor_b32 {TB[1]}, 32, {TB[0]}\nv_add_u32 {TB[2]}, 0x10000, {TB[0]}\nv_add_u32 {TB[3]}, 0x10000, {TB[1]}")
    a(f"s_lshl_b32 {sWo}, {sW}, 17\ns_lshl_b32 {sT0}, {sH}, 8\ns_add_u32 {sWo}, {sWo}, {sT0}\ns_lshl_b32 {sT2}, {sW}, 12")
    def mk(ks):
        def dma(b):
            for mat,srd in ((0,sB),(1,sC)):
                for nn in range(4):
                    a(f"s_add_u32 m0, {sT2}, {b*32768+mat*16384+nn*1024}\ns_add_u32 {sO1}, {sWo}, {(64*ks+4*nn)*8192}\nbuffer_load_dwordx4 {VO4[nn]}, {srd}, {sO1} offen lds")
        def rd(b):
            for t in range(4):
                mat,ct=t//2,t%2
                for q4 in range(4):
                    off=(b%2)*32768+mat*16384+(32*(q4//2)+2*(q4%2))*256
                    a(f"ds_read_b64_tr_b16 {Wq(ks,t).sub(2*q4,2)}, {TB[2*(b//2)+ct]} offset:{off}")
        def post(b):
            for t in range(4):
                for h2 in range(2): a(f"ds_write_b128 {vWl[b//2]}, {WS.sub(t*8+4*h2,4)} offset:{(b%2)*32768+t*2048+h2*1024}")
            a("s_waitcnt lgkmcnt(0)")
        return (dma, rd, post if ks>=12 else None)
    chunk_pipe(a, [mk(ks) for ks in range(16)], lambda: a.arrive(vt0,vt1))
    a(f"v_mov_b32 {BM[0][1]}, 0\nv_mov_b32 {BM[1][0]}, 0")
    a.wait_arrived(vt0, vt1)
    a(f"s_mov_b32 {sS}, 0\ns_mov_b32 {sSl0}, 0\ns_mov_b32 {sSl1}, 1\ns_mov_b32 {sSl2}, 2\ns_mov_b32 {sDone}, 0")
    a.stamp_step=sS
    def wread(q, kl, t):
        for h2 in range(2): q.issue(('w',kl,t), f"ds_read_b128 {WS.sub(t*8+4*h2,4)}, {vWl[kl//2]} offset:{(kl%2)*32768+t*2048+h2*1024}")
    a.label("L_QK_loop")
    L=a.newlabel('kvok')
    a(f"s_cmp_lg_u32 {sDone}, 0\ns_cbranch_scc1 {L}\ns_add_u32 {sNeed}, {sS}, 1")
    a.wait_flags(vFl, vt0, sNeed, sleep=2)
    a(f"v_cmp_gt_u32 vcc, 64, {vt0}\ns_cbranch_vccnz {L}\ns_mov_b32 {sDone}, 1"); a.label(L)
    a(f"""s_lshl_b32 {sO1}, {sS}, 18
s_add_u32 {sO1}, {sO1}, {sKV}
s_add_u32 {sO2}, {sO1}, {VX}
s_add_u32 {sO1}, {sO1}, {KX}
s_lshl_b32 {sT0}, {sW}, 11
s_add_u32 m0, {sT0}, {KXL}
s_nop 0
buffer_load_dwordx4 {vLin}, {sWS}, {sO1} offen sc1 lds
buffer_load_dwordx4 {vLin}, {sWS}, {sO1} offen offset:1024 sc1 lds
buffer_load_dwordx4 {VXf.sub(0,4)}, {vLin}, {sWS}, {sO2} offen sc1
buffer_load_dwordx4 {VXf.sub(4,4)}, {vLin}, {sWS}, {sO2} offen offset:1024 sc1""")
    for i in range(16): a(f"v_mov_b32 {ACC[i]}, 0")
    q=LgkmQ(a)
    for t in range(4): wread(q,0,t)
    st(0)
    gather_mem(a); q.q=[]
    st(1)
    a(f"s_lshl_b32 {sO2}, {sSl2}, 15\ns_mov_b64 exec, {sLo}\nbuffer_store_dwordx4 {SENT}, {vPubO}, {sWS}, {sO2} offen\ns_mov_b64 exec, -1")
    order=[0,1,2,12,3,4,5,13,6,7,8,14,9,10,11,15]
    def aread(i): q.issue(('a',i), f"ds_read_b128 {AF.sub(4*(i%3),4)}, {vLdsR} offset:{order[i]*1024}")
    aread(0); aread(1)
    for i,ks in enumerate(order):
        for t in range(4):
            tags=[('a',i)] if t==0 else []
            if ks>=12: tags.append(('w',ks-12,t))
            if tags: q.need(*tags)
            a(f"v_smfmac_f32_16x16x64_bf16 {ACC.sub(4*t,4)}, {AF.sub(4*(i%3),4)}, {Wq(ks,t)}, {vIdx}")
            if t==0 and i+2<16: aread(i+2)
            if ks>=12 and ks<15: wread(q,ks-11,t)
    st(2)
    a(f"s_lshl_b32 {sO1}, {sSl0}, 15\nbuffer_load_dwordx2 {VMf}, {vVmLd}, {sWS}, {sO1} offen sc1")
    for t in range(4):
        T=ACC.sub(4*t,4); swap_add(a,T,T[0],T[1])
    for t in range(4):
        T=ACC.sub(4*t,4)
        a(f"v_cvt_pk_bf16_f32 {T[0]}, {T[0]}, {T[1]}")
        a(f"ds_write_b32 {vQw}, {T[0]} offset:{t*256}" if t<2 else f"ds_write_b32 {vKw}, {T[0]} offset:{(t-2)*512}")
    QF=WS.sub(0,16); KF=WS.sub(16,16); KX0=D.sub(0,16); KX1=ACC; S0=AF.sub(0,4); S1=AF.sub(4,4); SM=AF.sub(8,4)
    for ks in range(4): a(f"ds_read_b128 {KX0.sub(4*ks,4)}, {vKxR} offset:{ks*1024}")
    a("s_waitcnt lgkmcnt(4)\ns_barrier")
    q=LgkmQ(a); q.q=['kx0']*4
    for ks in range(4):
        if ks==3: q.need('kx0')
        for jj in range(2): q.issue(('q',ks), f"ds_read_b64_tr_b16 {QF.sub(4*ks+2*jj,2)}, {vQr} offset:{ks*512+jj*64}")
        q.issue(('kx1',ks), f"ds_read_b128 {KX1.sub(4*ks,4)}, {vKxR} offset:{4096+ks*1024}")
    def kread(ks):
        for jj in range(2): q.issue(('k',ks), f"ds_read_b64_tr_b16 {KF.sub(4*ks+2*jj,2)}, {vKr} offset:{ks*1024+jj*128}")
    for ks in range(4):
        q.need(('q',ks),('kx1',ks),'kx0')
        a(f"v_mfma_f32_16x16x32_bf16 {S0}, {KX0.sub(4*ks,4)}, {QF.sub(4*ks,4)}, {'0' if ks==0 else S0}")
        kread(ks)
        a(f"v_mfma_f32_16x16x32_bf16 {S1}, {KX1.sub(4*ks,4)}, {QF.sub(4*ks,4)}, {'0' if ks==0 else S1}")
    for ks in range(4):
        q.need(('k',ks))
        a(f"v_mfma_f32_16x16x32_bf16 {SM}, {KF.sub(4*ks,4)}, {QF.sub(4*ks,4)}, {'0' if ks==0 else SM}")
    a(f"s_lshl_b32 {sO2}, {sS}, 17\ns_lshl_b32 {sT0}, {sH}, 12\ns_add_u32 {sO2}, {sO2}, {sT0}\ns_lshl_b32 {sT0}, {sW}, 10\ns_add_u32 {sO2}, {sO2}, {sT0}\ns_add_u32 {sO2}, {sO2}, {KM}")
    Ls=[a.newlabel('km') for _ in range(4)]; Le=a.newlabel('kme')
    for w in range(3): a(f"s_cmp_eq_u32 {sW}, {w}\ns_cbranch_scc1 {Ls[w]}")
    for w in (3,0,1,2):
        if w<3: a.label(Ls[w])
        a(f"buffer_store_dwordx4 {KF.sub(4*w,4)}, {vLin}, {sWS}, {sO2} offen sc1")
        if w!=2: a(f"s_branch {Le}")
    a.label(Le)
    st(3)
    vals=[S0[i] for i in range(4)]+[S1[i] for i in range(4)]+[SM[0],SM[1]]
    a(f"v_max3_f32 {MX}, {vals[0]}, {vals[1]}, {vals[2]}")
    for i in (3,5,7): a(f"v_max3_f32 {MX}, {MX}, {vals[i]}, {vals[i+1]}")
    a(f"v_max_f32 {MX}, {MX}, {vals[9]}")
    for perm in ('v_permlane16_swap_b32','v_permlane32_swap_b32'):
        a(f"v_mov_b32 {vt0}, {MX}\n{perm} {MX}, {vt0}\nv_max_f32 {MX}, {MX}, {vt0}")
    a(f"v_mul_f32 {MX}, {sC1}, {MX}")
    for r in vals: a(f"v_fma_f32 {r}, {r}, {sC1}, -{MX}")
    for r in vals: a(f"v_exp_f32 {r}, {r}")
    for i in range(4): a(f"v_cvt_pk_bf16_f32 {BX[i]}, {vals[2*i]}, {vals[2*i+1]}")
    a(f"v_cvt_pk_bf16_f32 {BM[0][0]}, {SM[0]}, {SM[1]}\nv_cvt_pk_bf16_f32 {BM[1][1]}, {SM[0]}, {SM[1]}")
    SUM=D.sub(0,4); O=D.sub(4,8)
    a(f"v_mfma_f32_16x16x32_bf16 {SUM}, {ONE}, {BX}, 0\nv_mfma_f32_16x16x16_bf16 {SUM}, {ONE.sub(0,2)}, {BM[0]}, {SUM}")
    for ct in range(2): a(f"v_mfma_f32_16x16x32_bf16 {O.sub(4*ct,4)}, {VXf.sub(4*ct,4)}, {BX}, 0")
    Lok=a.newlabel('vmok')
    a(f"s_waitcnt vmcnt(1)\nv_max_u32 {vt0}, {VMf[0]}, {VMf[1]}\nv_cmp_eq_u32 vcc, -1, {vt0}\ns_cbranch_vccz {Lok}")
    a.poll_data([f"buffer_load_dwordx2 {VMf}, {vVmLd}, {sWS}, {sO1} offen sc1"], [VMf[0],VMf[1]], vt0)
    a.label(Lok)
    for ct in range(2): a(f"v_mfma_f32_16x16x16_bf16 {O.sub(4*ct,4)}, {VMf}, {BM[ct]}, {O.sub(4*ct,4)}")
    a(f"v_rcp_f32 {RC}, {SUM[0]}")
    for i in range(8): a(f"v_mul_f32 {O[i]}, {O[i]}, {RC}")
    for i in range(4): a(f"v_cvt_pk_bf16_f32 {BX[i]}, {O[2*i]}, {O[2*i+1]}")
    a(f"s_mov_b64 exec, {sLo}\nbuffer_store_dwordx4 {BX}, {vPubO}, {sWS}, {sO1} offen\ns_mov_b64 exec, -1")
    st(4)
    rotate(a)
    a("s_waitcnt vmcnt(0)\ns_barrier")
    a.wave0(lambda: a.set_flag(sFlag, sS, vt0, vt1))
    a(f"s_cmp_lt_u32 {sS}, 64\ns_cbranch_scc1 L_QK_loop")
    dump_stamps(a, ST, SR)
    a("s_endpgm")

def role_vo(a, ST=False):
    a.label("L_role_VO")
    vOld='v5'; vPubVm='v6'; vPubMem='v13'; vXst='v14'; vXld='v15'; vRdW='v16'; vRdR='v17'; vVMg='v18'; vLin='v19'
    PKV=R('v',118,2); SS=R('v',120,8)
    def Wv(ks,t):
        if ks<8: return R('v',128+ks*16+t*8,8)
        return WS.sub(((ks-8)%2)*16+t*8,8)
    def Wo(i,t): return R('a',i*32+t*8,8)
    SR=['v0','v26','v27','v25']; st=lambda i: a.stamp(i, ST, SR)
    a.srd(sB,'Wv'); a.srd(sC,'Wo'); a.srd(sA,'mem0')
    a(f"s_add_u32 {sXW}, s36, {XB+0x1fffff}\ns_and_b32 {sXW}, {sXW}, 0xffe00000\ns_sub_u32 {sXW}, {sXW}, s36")
    Lnp=a.newlabel('noprobe')
    a(f"s_or_b32 {sT0}, {sX}, {sJ}\ns_and_b32 {sT0}, {sT}, 15\ns_or_b32 {sT0}, {sT0}, {sX}\ns_or_b32 {sT0}, {sT0}, {sW}\ns_cmp_lg_u32 {sT0}, 0\ns_cbranch_scc1 {Lnp}")
    a(f"v_lshlrev_b32 {vt0}, 2, {vL}\ns_add_u32 {sO1}, {sXW}, 0x180000\ns_add_u32 {sO2}, {sO1}, 8192\ns_mov_b32 s64, -1\ns_mov_b32 s65, -1")
    for rep in range(2):
        for so,dst in ((sO1,'s64'),(sO2,'s65')):
            a(f"s_memtime s[66:67]\ns_waitcnt lgkmcnt(0)\nbuffer_store_dword {vt0}, {vt0}, {sWS}, {so} offen sc1\ns_waitcnt vmcnt(0)\ns_memtime s[68:69]\ns_waitcnt lgkmcnt(0)\ns_sub_u32 s66, s68, s66\ns_min_u32 {dst}, {dst}, s66")
    a(f"s_cmp_lt_u32 s65, s64\ns_cselect_b32 {sT0}, 2, 1")
    a.lane0(lambda: a(f"v_mov_b32 {vt0}, {D_PROBE}\nv_mov_b32 {vt1}, {sT0}\nbuffer_store_dword {vt1}, {vt0}, {sDB}, 0 offen sc1"))
    a.label(Lnp)
    c,g,m,hf=common_setup(a)
    a(f"""s_lshl_b32 {sFlag}, {sH}, 7
s_add_u32 {sFlag}, {sFlag}, {FL(F_VM)}
v_lshlrev_b32 {vt0}, 9, {hf}
v_lshl_add_u32 {vt0}, {g}, 7, {vt0}
v_lshl_add_u32 {vt0}, {m}, 4, {vt0}
s_lshl_b32 {sT0}, {sW}, 13
s_add_u32 {sT0}, {sT0}, {sLB}
s_add_u32 {sT0}, {sT0}, {OBO}
v_add_u32 {vOld}, {sT0}, {vt0}
v_lshlrev_b32 {vLin}, 4, {vL}
s_lshl_b32 {sT0}, {sW}, 12
v_add_u32 {vWl[0]}, {sT0}, {vLin}
v_add_u32 {vWl[1]}, 0x10000, {vWl[0]}""")
    perm_g(a, vt1, g, vt0)
    a(f"""v_lshlrev_b32 {vt0}, 7, {vt1}
v_lshl_add_u32 {vt0}, {c}, 3, {vt0}
s_lshl_b32 {sT0}, {sW}, 9
s_lshl_b32 {sT1}, {sJ}, 11
s_add_u32 {sT1}, {sT1}, {sT0}
s_add_u32 {sT1}, {sT1}, {sLB}
s_add_u32 {sT1}, {sT1}, {VMBO}
v_add_u32 {vPubVm}, {sT1}, {vt0}
s_lshl_b32 {sT1}, {sH}, 11
s_add_u32 {sT1}, {sT1}, {sT0}
s_add_u32 {sT1}, {sT1}, {VM}
v_add_u32 {vVMg}, {sT1}, {vt0}
v_and_b32 {vt0}, 1, {vL}
v_lshl_add_u32 {vt0}, {vt1}, 1, {vt0}
v_lshlrev_b32 {vt0}, 5, {vt0}
v_lshrrev_b32 {vt1}, 1, {c}
v_lshl_add_u32 {vt0}, {vt1}, 2, {vt0}
s_lshl_b32 {sT0}, {sJ}, 10
s_lshl_b32 {sT1}, {sW}, 8
s_add_u32 {sT0}, {sT0}, {sT1}
s_add_u32 {sT0}, {sT0}, {sLB}
v_add_u32 {vPubMem}, {sT0}, {vt0}
v_lshlrev_b32 {vt0}, 2, {vL}
v_add_u32 {vt2}, {sT0}, {vt0}
s_lshl_b32 {sXme}, {sH}, 14
s_xor_b32 {sXpeer}, {sXme}, {16<<14}
s_add_u32 {sXme}, {sXme}, {sXW}
s_add_u32 {sXpeer}, {sXpeer}, {sXW}
s_lshl_b32 {sT0}, {sW}, 11
v_add_u32 {vXst}, {sT0}, {vLin}
v_add_u32 {vRdW}, {RED}, {vXst}
s_lshr_b32 {sT0}, {sW}, 1
s_lshl_b32 {sT0}, {sT0}, 10
s_and_b32 {sT1}, {sW}, 1
s_lshl_b32 {sT1}, {sT1}, 3
s_add_u32 {sT0}, {sT0}, {sT1}
v_add_u32 {vXld}, {sT0}, {vLin}
v_add_u32 {vRdR}, {RED}, {vXld}""")
    a(f"""v_lshrrev_b32 {vt0}, 3, {vL}
v_lshlrev_b32 {vt0}, 11, {vt0}
v_lshl_add_u32 {vt0}, {m}, 2, {vt0}
s_lshl_b32 {sT0}, {sJ}, 7
s_lshl_b32 {sT1}, {sW}, 5
s_add_u32 {sT0}, {sT0}, {sT1}
buffer_load_dword {vt1}, {vt0}, {sA}, {sT0} offen""")
    a.wave0(lambda: a.set_flag(sFlag, 0, 'v124', 'v125'))
    for k in range(3):
        if k: a(f"s_mov_b32 {sT0}, {k*0x4000}\nbuffer_store_dword {SENT[0]}, {vPubMem}, {sWS}, {sT0} offen")
        a(f"s_mov_b32 {sT0}, {k*0x8000}\nbuffer_store_dwordx2 {SENT.sub(0,2)}, {vPubVm}, {sWS}, {sT0} offen")
        for p in range(2):
            a(f"s_add_u32 {sT0}, {sXme}, {k*0x80000+p*8192}\nbuffer_store_dwordx4 {SENT}, {vXst}, {sWS}, {sT0} offen sc1\nbuffer_store_dwordx4 {SENT}, {vXst}, {sWS}, {sT0} offen offset:1024 sc1")
    a(f"s_waitcnt vmcnt(0)\nbuffer_store_dword {vt1}, {vt2}, {sWS}, 0 offen")
    VO4=[D[i] for i in range(4)]; TV=[D[4],D[5]]; VO2=[D[6],D[7]]; TO=[D[8],D[9]]; tx=D[10]
    w256_voffs(a, VO4)
    tr256_base(a, TV[0], False)
    a(f"v_add_u32 {TV[1]}, 0x10000, {TV[0]}")
    a(f"""v_lshrrev_b32 {vt0}, 3, {vL}
v_and_b32 {vt1}, 7, {vL}
v_lshrrev_b32 {vt2}, 2, {vt0}
v_lshlrev_b32 {vt2}, 1, {vt2}
v_xor_b32 {vt1}, {vt1}, {vt2}
v_lshlrev_b32 {vt0}, 11, {vt0}
v_lshl_add_u32 {VO2[0]}, {vt1}, 4, {vt0}
v_xor_b32 {VO2[1]}, 64, {VO2[0]}""")
    gB,r,qq,t,u,f='v120','v121','v122','v123','v124','v125'
    tr_lane(a,gB,r,qq)
    a(f"""v_lshrrev_b32 {t}, 1, {r}
v_lshlrev_b32 {u}, 5, {t}
v_lshlrev_b32 {f}, 1, {t}
v_lshrrev_b32 {t}, 1, {gB}
v_lshl_add_u32 {u}, {t}, 3, {u}
v_and_b32 {t}, 1, {gB}
v_lshl_add_u32 {u}, {t}, 2, {u}
v_add_u32 {f}, {f}, {t}
v_and_b32 {t}, 1, {r}
v_add_u32 {u}, {u}, {t}
v_lshlrev_b32 {u}, 7, {u}
v_lshlrev_b32 {f}, 1, {f}
v_lshrrev_b32 {t}, 1, {qq}
v_or_b32 {t}, {t}, {f}
v_lshl_add_u32 {u}, {t}, 4, {u}
v_and_b32 {t}, 1, {qq}
v_lshl_add_u32 {u}, {t}, 3, {u}
s_lshl_b32 {sT0}, {sW}, 13
v_add_u32 {TO[0]}, {sT0}, {u}
v_add_u32 {TO[1]}, 0x10000, {TO[0]}""")
    sWoV='s64'; sM='s65'
    a(f"""s_lshl_b32 {sWo}, {sX}, 2
s_add_u32 {sWo}, {sWo}, {sW}
s_lshl_b32 {sWo}, {sWo}, 20
s_lshl_b32 {sT0}, {sJ}, 7
s_add_u32 {sWo}, {sWo}, {sT0}
s_lshl_b32 {sWoV}, {sW}, 18
s_lshl_b32 {sT0}, {sH}, 8
s_add_u32 {sWoV}, {sWoV}, {sT0}
s_lshl_b32 {sM}, {sW}, 13""")
    def mko(i):
        def dma(b):
            for n in range(8): a(f"s_add_u32 m0, {sM}, {b*32768+n*1024}\ns_add_u32 {sO1}, {sWo}, {(64*i+8*n)*2048}\nbuffer_load_dwordx4 {VO2[n//4]}, {sC}, {sO1} offen lds")
        def rd(b):
            for t in range(4):
                a(f"v_xor_b32 {tx}, {32*t}, {TO[b//2]}")
                for q4 in range(4):
                    a(f"ds_read_b64_tr_b16 {Wo(i,t).sub(2*q4,2)}, {tx} offset:{(b%2)*32768+(16*(q4//2)+2*(q4%2))*128}")
        return (dma, rd, None)
    def mkv(cc):
        def dma(b):
            for n in range(8): a(f"s_add_u32 m0, {sM}, {b*32768+n*1024}\ns_add_u32 {sO1}, {sWoV}, {(128*cc+4*n)*8192}\nbuffer_load_dwordx4 {VO4[n%4]}, {sB}, {sO1} offen lds")
        def rd(b):
            for k2 in range(2):
                for t in range(2):
                    for q4 in range(4):
                        a(f"ds_read_b64_tr_b16 {Wv(2*cc+k2,t).sub(2*q4,2)}, {TV[b//2]} offset:{(b%2)*32768+(64*k2+32*(q4//2)+2*(q4%2))*256+t*8}")
        def post(b):
            for k2 in range(2):
                for t in range(2):
                    for h2 in range(2): a(f"ds_write_b128 {vWl[b//2]}, {WS.sub(k2*16+t*8+4*h2,4)} offset:{(b%2)*32768+k2*16384+t*2048+h2*1024}")
            a("s_waitcnt lgkmcnt(0)")
        return (dma, rd, post if cc>=4 else None)
    chunk_pipe(a, [mko(i) for i in range(8)]+[mkv(cc) for cc in range(8)], lambda: a.arrive(vt0,vt1))
    a.wait_arrived(vt0, vt1)
    a(f"v_mov_b32 {vt0}, {D_PROBE}")
    a.wait_flags(vt0, vt1, 1, sleep=2, srd=sDB)
    a(f"""v_readfirstlane_b32 {sP}, {vt1}
s_nop 3
s_and_b32 {sP}, {sP}, 2
s_lshl_b32 {sP}, {sP}, 12
s_add_u32 {sXme}, {sXme}, {sP}
s_add_u32 {sXpeer}, {sXpeer}, {sP}
s_mov_b32 {sS}, 0
s_mov_b32 {sSl0}, 0
s_mov_b32 {sSl1}, 1
s_mov_b32 {sSl2}, 2""")
    a.stamp_step=sS
    def wread(q, kl, t):
        for h2 in range(2): q.issue(('w',kl,t), f"ds_read_b128 {WS.sub((kl%2)*16+t*8+4*h2,4)}, {vWl[kl//4]} offset:{(kl%4)*16384+t*2048+h2*1024}")
    a.label("L_VO_loop")
    for i in range(8): a(f"v_mov_b32 {ACC[i]}, 0")
    q=LgkmQ(a)
    for kl in range(2):
        for t in range(2): wread(q,kl,t)
    st(0)
    gather_mem(a); q.q=[]
    st(1)
    order=[0,8,1,9,2,10,3,11,4,12,5,13,6,14,7,15]
    def aread(i): q.issue(('a',i), f"ds_read_b128 {AF.sub(4*(i%3),4)}, {vLdsR} offset:{order[i]*1024}")
    aread(0); aread(1)
    for i,ks in enumerate(order):
        for t in range(2):
            tags=[('a',i)] if t==0 else []
            if ks>=8: tags.append(('w',ks-8,t))
            if tags: q.need(*tags)
            a(f"v_smfmac_f32_16x16x64_bf16 {ACC.sub(4*t,4)}, {AF.sub(4*(i%3),4)}, {Wv(ks,t)}, {vIdx}")
            if t==0 and i+2<16: aread(i+2)
            if ks>=8 and ks<14: wread(q,ks-6,t)
    for t in range(2):
        T=ACC.sub(4*t,4); swap_add(a,T,T[0],T[1])
    for t in range(2): a(f"v_cvt_pk_bf16_f32 {PKV[t]}, {ACC[4*t]}, {ACC[4*t+1]}")
    a(f"""s_lshl_b32 {sO1}, {sSl0}, 15
buffer_store_dwordx2 {PKV}, {vPubVm}, {sWS}, {sO1} offen
s_lshl_b32 {sO2}, {sS}, 16
buffer_store_dwordx2 {PKV}, {vVMg}, {sWS}, {sO2} offen sc1
s_lshl_b32 {sO2}, {sSl2}, 15
buffer_store_dwordx2 {SENT.sub(0,2)}, {vPubVm}, {sWS}, {sO2} offen
s_lshl_b32 {sO2}, {sSl2}, 14
buffer_store_dword {SENT[0]}, {vPubMem}, {sWS}, {sO2} offen
s_lshl_b32 {sO2}, {sSl1}, 19
s_add_u32 {sO2}, {sO2}, {sXme}
buffer_store_dwordx4 {SENT}, {vXst}, {sWS}, {sO2} offen sc1
buffer_store_dwordx4 {SENT}, {vXst}, {sWS}, {sO2} offen offset:1024 sc1
s_add_u32 {sNeed}, {sS}, 1
s_cmp_eq_u32 {sS}, 63
s_cbranch_scc1 L_VO_last""")
    for i in range(16): a(f"v_mov_b32 {ACC[i]}, 0")
    st(2)
    a(f"s_add_u32 {sO3}, {sO1}, 4096")
    a.poll_data([f"buffer_load_dwordx4 {D.sub(4*i,4)}, {vOld}, {sWS}, {sO1 if i<4 else sO3} offen offset:{(i%4)*1024} sc1" for i in range(8)], [D[i] for i in range(32)], vt0)
    st(3)
    for i in range(8):
        for t in range(4): a(f"v_smfmac_f32_16x16x64_bf16 {ACC.sub(4*t,4)}, {D.sub(4*i,4)}, {Wo(i,t)}, {vIdx}")
    for t in range(4): swap_add(a, ACC.sub(4*t,4), SS[2*t], SS[2*t+1])
    a(f"s_lshl_b32 {sO2}, {sSl0}, 19\ns_add_u32 {sO1}, {sO2}, {sXme}\ns_add_u32 {sO2}, {sO2}, {sXpeer}\ns_add_u32 {sO3}, {sO2}, 4096")
    a(f"buffer_store_dwordx4 {SS.sub(0,4)}, {vXst}, {sWS}, {sO1} offen sc1\nbuffer_store_dwordx4 {SS.sub(4,4)}, {vXst}, {sWS}, {sO1} offen offset:1024 sc1")
    a(f"ds_write_b128 {vRdW}, {SS.sub(0,4)}\nds_write_b128 {vRdW}, {SS.sub(4,4)} offset:1024\ns_waitcnt lgkmcnt(0)\ns_barrier")
    st(4)
    LR=WS.sub(0,8); XR=WS.sub(8,8)
    for i in range(4): a(f"ds_read_b64 {LR.sub(2*i,2)}, {vRdR} offset:{i*2048}")
    a.wave0(lambda: a.set_flag(sFlag, sNeed, vt0, vt1))
    a("s_waitcnt lgkmcnt(0)")
    def sum4(X):
        for k in range(2): a(f"v_add_f32 {X[k]}, {X[k]}, {X[2+k]}\nv_add_f32 {X[4+k]}, {X[4+k]}, {X[6+k]}")
        for k in range(2): a(f"v_add_f32 {X[k]}, {X[k]}, {X[4+k]}")
    sum4(LR)
    a.poll_data([f"buffer_load_dwordx2 {XR.sub(2*i,2)}, {vXld}, {sWS}, {sO2 if i<2 else sO3} offen offset:{(i%2)*2048} sc1" for i in range(4)], [XR[i] for i in range(8)], vt0)
    sum4(XR)
    a(f"""v_add_f32 {LR[0]}, {LR[0]}, {XR[0]}
v_add_f32 {LR[1]}, {LR[1]}, {XR[1]}
v_mov_b32_dpp {LR[2]}, {LR[0]} quad_perm:[1,0,3,2] row_mask:0xf bank_mask:0xf
v_mov_b32_dpp {LR[3]}, {LR[1]} quad_perm:[1,0,3,2] row_mask:0xf bank_mask:0xf
v_cndmask_b32 {LR[0]}, {LR[0]}, {LR[3]}, {sOdd}
v_cndmask_b32 {LR[1]}, {LR[2]}, {LR[1]}, {sOdd}
v_cvt_pk_bf16_f32 {vt0}, {LR[0]}, {LR[1]}
s_lshl_b32 {sO1}, {sSl1}, 14
buffer_store_dword {vt0}, {vPubMem}, {sWS}, {sO1} offen""")
    st(5)
    rotate(a)
    a("s_branch L_VO_loop")
    a.label("L_VO_last")
    a("s_waitcnt vmcnt(0)\ns_barrier")
    a.wave0(lambda: a.set_flag(sFlag, sNeed, vt0, vt1))
    dump_stamps(a, ST, SR)
    a("s_endpgm")
```

```python
from asmlib import *
FLAGS=0x0; GOFF=0x10000; STAMPS=0x20000
LOC0=0x100000; LOCSTR=0x100000; MEMO=0x0; OBO=0x10000; VMBO=0x30000
XB=0x400000
KX=0x1000000; QX=0x2000000; VX=0x3000000; HB=0x4000000; OB=0x5000000; PA=0x6000000; PB=0x7000000; KM=0x8000000; VM=0x8800000
SEGSTR=0x40000
F_K=0; F_V=32; F_Q=64; F_F1=96; F_F2=128; F_WO=192; F_KM=224; F_VM=256; F_ATT=288; F_GATE=416
def FL(i): return FLAGS+i*128
D_ARR=64; D_PROBE=68
KA=dict(x=0,mem0=8,Wq=16,Wk=24,Wv=32,Wo=40,w1=64,w2=72,gw=80,out=88,dbg=96,ws=104)
SZ=dict(x=4194304,mem0=16384,Wq=8388608,Wk=8388608,Wv=8388608,Wo=8388608,w1=7340032,w2=7340032,gw=2048,out=4194304)
LDS_CTRL=163328
SPIN=1<<17
sWS=R('s',8,4); sDB=R('s',12,4); sA=R('s',16,4); sB=R('s',20,4); sC=R('s',24,4)
sX='s28'; sT='s29'; sW='s30'; sAb='s31'; sCt='s32'; sT0='s33'; sT1='s34'; sT2='s35'
sEX='s[96:97]'
vL='v1'
class G(Asm):
    def srd(self, dst, name):
        b=dst.base
        self(f"s_load_dwordx2 s[4:5], s[0:1], {KA[name]}\ns_waitcnt lgkmcnt(0)\ns_mov_b32 s{b}, s4\ns_mov_b32 s{b+1}, s5\ns_mov_b32 s{b+2}, {SZ[name]}\ns_mov_b32 s{b+3}, 0x20000")
    def spin_tail(self, L, sleep=0):
        if sleep: self(f"s_sleep {sleep}")
        self(f"s_add_u32 {sCt}, {sCt}, 1\ns_cmp_lt_u32 {sCt}, {sAb}\ns_cbranch_scc1 {L}\ns_mov_b32 {sAb}, 0")
    def umax(self, dst, rs):
        rs=list(rs)
        if len(rs)==1: self(f"v_mov_b32 {dst}, {rs[0]}")
        elif len(rs)==2: self(f"v_max_u32 {dst}, {rs[0]}, {rs[1]}")
        else:
            self(f"v_max3_u32 {dst}, {rs[0]}, {rs[1]}, {rs[2]}"); i=3
            while i+1<len(rs): self(f"v_max3_u32 {dst}, {dst}, {rs[i]}, {rs[i+1]}"); i+=2
            if i<len(rs): self(f"v_max_u32 {dst}, {dst}, {rs[i]}")
    def poll_data(self, loads, rs, vt, sleep=0):
        L=self.newlabel('pd'); Ld=self.newlabel('pdd')
        self(f"s_mov_b32 {sCt}, 0"); self.label(L)
        for l in loads: self(l)
        self("s_waitcnt vmcnt(0)")
        self.umax(vt, rs)
        self(f"v_cmp_eq_u32 vcc, -1, {vt}\ns_cbranch_vccz {Ld}")
        self.spin_tail(L, sleep); self.label(Ld)
    def wait_flags(self, vaddr, vt, need, sleep=1, soff='0', srd=None):
        L=self.newlabel('wf'); Ld=self.newlabel('wfd')
        self(f"s_mov_b32 {sCt}, 0"); self.label(L)
        self(f"buffer_load_dword {vt}, {vaddr}, {srd or sWS}, {soff} offen sc1\ns_waitcnt vmcnt(0)\nv_cmp_gt_u32 vcc, {need}, {vt}\ns_cbranch_vccz {Ld}")
        self.spin_tail(L, sleep); self.label(Ld)
    def lane0(self, body):
        self(f"s_mov_b64 {sEX}, exec\ns_mov_b64 exec, 1"); body(); self(f"s_mov_b64 exec, {sEX}")
    def wave0(self, body):
        L=self.newlabel('w0'); self(f"s_cmp_lg_u32 {sW}, 0\ns_cbranch_scc1 {L}"); body(); self.label(L)
    def set_flag(self, soff, val, va, vb):
        self.lane0(lambda: self(f"v_mov_b32 {va}, {soff}\nv_mov_b32 {vb}, {val}\nbuffer_store_dword {vb}, {va}, {sWS}, 0 offen sc1"))
    def arrive(self, va, vb):
        self.wave0(lambda: self.lane0(lambda: self(f"v_mov_b32 {va}, {D_ARR}\nv_mov_b32 {vb}, 1\nbuffer_atomic_add {vb}, {va}, {sDB}, 0 offen")))
    def wait_arrived(self, va, vb):
        def body():
            self(f"v_mov_b32 {va}, {D_ARR}"); self.wait_flags(va, vb, 256, sleep=4, srd=sDB)
        self.wave0(body); self("s_barrier")
    def stamp(self, idx, on, regs):
        if not on: return
        self(f"{self.stamp_op} s[98:99]\ns_waitcnt lgkmcnt(0)")
        if idx%2==0: self(f"s_mov_b32 s100, s98\ns_mov_b32 m0, {self.stamp_step}\nv_writelane_b32 {regs[idx//2]}, s100, m0")
        else: self(f"s_pack_ll_b32_b16 s100, s100, s98\ns_mov_b32 m0, {self.stamp_step}\nv_writelane_b32 {regs[idx//2]}, s100, m0")

class LgkmQ:
    def __init__(self, a): self.a=a; self.q=[]
    def issue(self, tag, text):
        self.a(text); self.q.append(tag); assert len(self.q)<=15, self.q
    def need(self, *tags):
        idx=max((i for i,t in enumerate(self.q) if t in tags), default=-1)
        if idx>=0:
            n=len(self.q)-1-idx
            assert n<=15
            self.a(f"s_waitcnt lgkmcnt({n})"); self.q=self.q[idx+1:]
    def drain(self):
        if self.q: self.a("s_waitcnt lgkmcnt(0)"); self.q=[]

def prologue(a, T):
    a(f"""s_cmp_ge_u32 s2, 256
s_cbranch_scc1 L_end
s_getreg_b32 {sX}, hwreg(HW_REG_XCC_ID, 0, 4)
s_load_dwordx4 s[4:7], s[0:1], 96
v_lshrrev_b32 v2, 6, v0
v_and_b32 {vL}, 63, v0
v_readfirstlane_b32 {sW}, v2
s_mov_b32 {sAb}, {SPIN}
s_waitcnt lgkmcnt(0)
s_mov_b32 s12, s4
s_mov_b32 s13, s5
s_mov_b32 s14, 256
s_mov_b32 s15, 0x20000
s_mov_b32 s8, s6
s_mov_b32 s9, s7
s_mov_b32 s10, 0x10000000
s_mov_b32 s11, 0x20000
s_mov_b32 s36, s6
v_mov_b32 v2, {LDS_CTRL}
s_cmp_ge_u32 {sX}, 8
s_cbranch_scc1 L_end
s_cmp_lg_u32 {sW}, 0
s_cbranch_scc1 L_noticket
s_lshl_b32 {sT0}, {sX}, 2
s_add_u32 {sT1}, {sT0}, 128
s_cmp_lt_u32 {sX}, 2
s_cselect_b32 {sT0}, {sT1}, {sT0}
s_mov_b64 {sEX}, exec
s_mov_b64 exec, 1
v_mov_b32 v3, {sT0}
v_mov_b32 v4, 1
buffer_atomic_add v4, v3, {sDB}, 0 offen sc0
s_waitcnt vmcnt(0)
ds_write_b32 v2, v4
s_waitcnt lgkmcnt(0)
s_mov_b64 exec, {sEX}
L_noticket:
s_barrier
ds_read_b32 v4, v2
s_waitcnt lgkmcnt(0)
v_readfirstlane_b32 {sT}, v4
s_nop 3
s_cmp_ge_u32 {sT}, 32
s_cbranch_scc1 L_end
""")
```

```python
import re
_REG = re.compile(r'\b([vas])\[(\d+):(\d+)\]|\b([vas])(\d+)\b|\b(vcc|m0|exec)\b')
TRANS = ('v_exp_f32','v_log_f32','v_rcp_f32','v_rsq_f32','v_sqrt_f32','v_sin_f32','v_cos_f32')
def regs(tok):
    out=set()
    for m in _REG.finditer(tok):
        if m.group(1):
            for i in range(int(m.group(2)), int(m.group(3))+1): out.add(m.group(1)+str(i))
        elif m.group(4): out.add(m.group(4)+m.group(5))
        else: out.add(m.group(6))
    return out
class I: pass
def parse(line):
    s=line.split(';')[0].strip()
    if not s or s.endswith(':') or s.startswith('.'): return None
    p=s.split(None,1); op=p[0]; rest=p[1] if len(p)>1 else ''
    ops=[o.strip() for o in rest.split(',')] if rest else []
    i=I(); i.op=op; i.w=set(); i.r=set(); i.cls='other'; i.states=1; i.srcC=set(); i.ab=set(); i.dpp=set(); i.data=set(); i.wide=False; i.ldsdma=False
    if op=='s_nop': i.states=int(ops[0],0)+1; i.cls='nop'; return i
    if op.startswith('v_mfma') or op.startswith('v_smfmac'):
        i.cls='mfma'; i.w=regs(ops[0])
        if op.startswith('v_smfmac'):
            i.srcC=regs(ops[0]); i.ab=regs(ops[1])|regs(ops[2])|regs(ops[3].split()[0])
        else:
            i.ab=regs(ops[1])|regs(ops[2]); i.srcC=regs(ops[3].split()[0])
        i.r=i.ab|i.srcC; return i
    if op.startswith('v_'):
        i.cls='valu'
        i.trans = any(op.startswith(t) for t in TRANS)
        if op.startswith('v_permlane'):
            i.w=regs(ops[0])|regs(ops[1]); i.r=set(i.w); i.perm=True; return i
        i.w=regs(ops[0])
        k=1
        if op.startswith(('v_add_co','v_addc_co','v_sub_co','v_subb_co')): i.w|=regs(ops[1]); k=2
        for o in ops[k:]: i.r|=regs(o.split(' row_')[0].split(' quad_perm')[0])
        if op.startswith(('v_fmac','v_dot2c')): i.r|=regs(ops[0])
        if 'dpp' in op or 'row_' in rest or 'quad_perm' in rest:
            i.dpp=regs(ops[1].split()[0]); i.r|=regs(ops[0])
        if op.startswith('v_cndmask') and len(ops)==3: i.r.add('vcc')
        return i
    if op.startswith(('buffer_','global_')):
        i.cls='vmem'
        allr=set()
        for o in ops: allr|=regs(o)
        if ' lds' in (' '+rest) or 'load_lds' in op: i.r=allr|{'m0'}; i.ldsdma=True
        elif '_load' in op: i.w=regs(ops[0]); i.r=allr-i.w | set().union(*[regs(o) for o in ops[1:]]) if len(ops)>1 else set()
        elif 'atomic' in op:
            i.r=allr
            if 'sc0' in rest: i.w=regs(ops[0])
        elif op in ('buffer_inv','buffer_wbl2'): pass
        else:
            i.r=allr
            i.data=regs(ops[0]) if op.startswith('buffer') else regs(ops[1])
            i.wide = op.endswith('x4') or op.endswith('x3')
        return i
    if op.startswith('ds_'):
        i.cls='ds'
        if op.startswith(('ds_read','ds_bpermute','ds_swizzle')) or '_rtn' in op:
            i.w=regs(ops[0])
            for o in ops[1:]: i.r|=regs(o.split()[0])
        else:
            for o in ops: i.r|=regs(o.split()[0])
        return i
    if op.startswith('s_'):
        i.cls='salu'
        if op.startswith(('s_cmp','s_cbranch','s_branch','s_waitcnt','s_barrier','s_endpgm','s_sleep','s_setprio','s_bitcmp')):
            for o in ops: i.r|=regs(o)
            return i
        i.w=regs(ops[0]) if ops else set()
        for o in ops[1:]: i.r|=regs(o)
        if 'saveexec' in op: i.w.add('exec')
        return i
    raise ValueError(line)
def need(p, c):
    n=0
    if p.cls=='valu':
        vw={x for x in p.w if x[0] in 'va' and x!='vcc'}
        sw=p.w-vw
        if c.cls=='mfma' and vw&c.r: n=max(n,2)
        if c.cls=='valu':
            if getattr(c,'perm',False) and vw&c.r: n=max(n,2)
            if c.dpp&vw: n=max(n,2)
            if c.op.startswith(('v_readfirstlane','v_readlane')) and vw&c.r: n=max(n,1)
            if getattr(p,'trans',False) and not getattr(c,'trans',False) and vw&c.r: n=max(n,1)
            if sw&c.r: n=max(n,2)
            if c.op.startswith(('v_readlane','v_writelane')) and sw&c.r: n=max(n,4)
        if c.cls=='vmem' and sw&c.r: n=max(n,5)
    if p.cls=='mfma':
        passes = 8 if '32x32' in p.op else 4
        raw = 12 if passes==8 else 8
        if c.cls=='mfma':
            if p.w&c.ab: n=max(n,raw)
            if p.w&c.srcC and not (c.srcC==p.w and c.op==p.op): n=max(n, raw)
            if p.w&c.w and not (p.w==c.w and c.op==p.op): n=max(n, raw)
        elif c.cls in ('valu','vmem','ds'):
            if p.w&(c.r|c.w): n=max(n,raw)
            if c.cls=='valu' and p.srcC&c.w: n=max(n, 7 if passes==8 else 3)
    if p.cls=='salu' and 'm0' in p.w and c.cls=='vmem' and c.ldsdma: n=max(n,1)
    if p.cls=='vmem' and p.wide and p.data&c.w: n=max(n, 2 if c.cls=='valu' else 1)
    return n
def fix(text, window=24, report=None):
    out=[]; hist=[]
    ins=0
    for line in text.split('\n'):
        c=parse(line)
        if c is None:
            out.append(line); continue
        if c.cls!='nop':
            dist=0; miss=0
            for p in reversed(hist):
                k=need(p,c)
                if k>dist: miss=max(miss,k-dist)
                dist+=p.states
                if dist>=14: break
            if miss>0:
                out.append(f'  s_nop {miss-1}'); ins+=1
                if report is not None: report.append((line.strip(),miss))
                n=I(); n.cls='nop'; n.states=miss; n.op='s_nop'; n.w=set(); n.r=set(); n.wide=False; hist.append(n)
        out.append(line); hist.append(c)
        if len(hist)>window: hist.pop(0)
    return '\n'.join(out)
```

```python
from common import *
import stream as S
def role_att(a):
    a.label("L_role_ATT")
    sSeg='s40'; sCnt='s41'; sOff='s42'; sO='s43'; sFlag='s44'; sNeed='s45'; sIn='s46'; sC1='s47'
    M=[f"s[{56+2*i}:{57+2*i}]" for i in range(4)]
    vLin='v2'; vF1='v3'; vF2='v4'; vt0='v5'; vt1='v6'; vL8='v7'; vt2='v8'; vt3='v9'
    Q=R('v',16,32); K=R('v',48,32); V=R('v',80,32); KMf=R('v',112,16); VMf=R('v',128,8)
    S00=R('v',136,4); S01=R('v',140,4); S11=R('v',144,4); SM0=R('v',148,4); SM1=R('v',152,4)
    ONE=R('v',156,4); BX=[R('v',160,4),R('v',164,4)]; BM=[[R('v',168,2),R('v',170,2)],[R('v',172,2),R('v',174,2)]]
    SUM=[R('v',176,4),R('v',180,4)]; RC=['v184','v185']; MX=['v186','v187']; OA=R('v',188,64)
    PK=R('a',0,1)
    a(f"s_lshl_b32 {sFlag}, {sW}, 5\ns_add_u32 {sFlag}, {sFlag}, {sT}\ns_lshl_b32 {sFlag}, {sFlag}, 7\ns_add_u32 {sFlag}, {sFlag}, {FL(F_ATT)}")
    a.set_flag(sFlag, 0, vt0, vt1)
    a("s_waitcnt vmcnt(0)\ns_barrier"); a.arrive(vt0,vt1)
    a(f"""v_lshlrev_b32 {vLin}, 4, {vL}
v_lshlrev_b32 {vL8}, 3, {vL}
v_min_u32 {vt0}, 2, {vL}
v_lshlrev_b32 {vt0}, 12, {vt0}
s_lshl_b32 {sT0}, {sT}, 7
v_add_u32 {vF1}, {sT0}, {vt0}
v_and_b32 {vt0}, 1, {vL}
v_lshlrev_b32 {vt0}, 12, {vt0}
s_add_u32 {sT0}, {sT0}, {FL(F_KM)}
v_add_u32 {vF2}, {sT0}, {vt0}
v_and_b32 {vt0}, 15, {vL}
v_lshrrev_b32 {vt1}, 4, {vL}
v_lshlrev_b32 {vt1}, 2, {vt1}
s_mov_b32 {sC1}, 0x3e0293ee""")
    for i in range(4):
        a(f"v_add_u32 {vt2}, {i}, {vt1}\nv_cmp_le_u32 {M[i]}, {vt2}, {vt0}")
    for i in range(4): a(f"v_mov_b32 {ONE[i]}, 0x3f803f80")
    a(f"v_mov_b32 {BX[0][2]}, 0\nv_mov_b32 {BX[0][3]}, 0")
    for qt in range(2): a(f"v_mov_b32 {BM[qt][0][1]}, 0\nv_mov_b32 {BM[qt][1][0]}, 0")
    a.wait_arrived(vt0, vt1)
    a(f"s_mov_b32 {sSeg}, {sW}\ns_mov_b32 {sCnt}, 0")
    a.label("L_ATT_loop")
    a(f"s_add_u32 {sNeed}, {sSeg}, 1")
    a.wait_flags(vF1, vt0, sNeed, sleep=8)
    a(f"s_lshl_b32 {sOff}, {sSeg}, 18\ns_lshl_b32 {sT0}, {sT}, 13\ns_add_u32 {sOff}, {sOff}, {sT0}")
    for base,dst in ((KX,K),(QX,Q),(VX,V)):
        for hf in range(2):
            a(f"s_add_u32 {sIn}, {sOff}, {base+hf*4096}")
            for i in range(4): a(f"buffer_load_dwordx4 {dst.sub(16*hf+4*i,4)}, {vLin}, {sWS}, {sIn} offen offset:{i*1024} sc1")
    a("s_waitcnt vmcnt(8)")
    for acc,kt,qt in ((S00,0,0),(S01,0,1),(S11,1,1)):
        for ks in range(4):
            a(f"v_mfma_f32_16x16x32_bf16 {acc}, {K.sub(16*kt+4*ks,4)}, {Q.sub(16*qt+4*ks,4)}, {'0' if ks==0 else acc}")
    a.wait_flags(vF2, vt0, sNeed, sleep=2)
    a(f"s_lshl_b32 {sIn}, {sSeg}, 17\ns_lshl_b32 {sT0}, {sT}, 12\ns_add_u32 {sIn}, {sIn}, {sT0}\ns_add_u32 {sIn}, {sIn}, {KM}")
    for i in range(4): a(f"buffer_load_dwordx4 {KMf.sub(4*i,4)}, {vLin}, {sWS}, {sIn} offen offset:{i*1024} sc1")
    a(f"s_lshl_b32 {sIn}, {sSeg}, 16\ns_lshl_b32 {sT0}, {sT}, 11\ns_add_u32 {sIn}, {sIn}, {sT0}\ns_add_u32 {sIn}, {sIn}, {VM}")
    for i in range(4): a(f"buffer_load_dwordx2 {VMf.sub(2*i,2)}, {vL8}, {sWS}, {sIn} offen offset:{i*512} sc1")
    a(f"v_mov_b32 {vt3}, 0xff800000")
    for acc in (S00,S11):
        for i in range(4): a(f"v_cndmask_b32 {acc[i]}, {vt3}, {acc[i]}, {M[i]}")
    a("s_waitcnt vmcnt(4)")
    for acc,qt in ((SM0,0),(SM1,1)):
        for ks in range(4):
            a(f"v_mfma_f32_16x16x32_bf16 {acc}, {KMf.sub(4*ks,4)}, {Q.sub(16*qt+4*ks,4)}, {'0' if ks==0 else acc}")
    vals=[[S00[i] for i in range(4)]+[SM0[0],SM0[1]], [S01[i] for i in range(4)]+[S11[i] for i in range(4)]+[SM1[0],SM1[1]]]
    for qt in (0,1):
        v=vals[qt]; m=MX[qt]
        a(f"v_max3_f32 {m}, {v[0]}, {v[1]}, {v[2]}"); i=3
        while i+1<len(v): a(f"v_max3_f32 {m}, {m}, {v[i]}, {v[i+1]}"); i+=2
        if i<len(v): a(f"v_max_f32 {m}, {m}, {v[i]}")
    for perm in ('v_permlane16_swap_b32','v_permlane32_swap_b32'):
        a(f"v_mov_b32 {vt0}, {MX[0]}\nv_mov_b32 {vt1}, {MX[1]}\n{perm} {MX[0]}, {vt0}\n{perm} {MX[1]}, {vt1}\nv_max_f32 {MX[0]}, {MX[0]}, {vt0}\nv_max_f32 {MX[1]}, {MX[1]}, {vt1}")
    for qt in (0,1): a(f"v_mul_f32 {MX[qt]}, {sC1}, {MX[qt]}")
    for qt in (0,1):
        for r in vals[qt]: a(f"v_fma_f32 {r}, {r}, {sC1}, -{MX[qt]}")
    for qt in (0,1):
        for r in vals[qt]: a(f"v_exp_f32 {r}, {r}")
    a(f"""v_cvt_pk_bf16_f32 {BX[0][0]}, {S00[0]}, {S00[1]}
v_cvt_pk_bf16_f32 {BX[0][1]}, {S00[2]}, {S00[3]}
v_cvt_pk_bf16_f32 {BM[0][0][0]}, {SM0[0]}, {SM0[1]}
v_cvt_pk_bf16_f32 {BM[0][1][1]}, {SM0[0]}, {SM0[1]}
v_cvt_pk_bf16_f32 {BX[1][0]}, {S01[0]}, {S01[1]}
v_cvt_pk_bf16_f32 {BX[1][1]}, {S01[2]}, {S01[3]}
v_cvt_pk_bf16_f32 {BX[1][2]}, {S11[0]}, {S11[1]}
v_cvt_pk_bf16_f32 {BX[1][3]}, {S11[2]}, {S11[3]}
v_cvt_pk_bf16_f32 {BM[1][0][0]}, {SM1[0]}, {SM1[1]}
v_cvt_pk_bf16_f32 {BM[1][1][1]}, {SM1[0]}, {SM1[1]}
s_waitcnt vmcnt(0)""")
    def oacc(qt,et): return OA.sub(32*qt+4*et,4)
    for qt in (0,1): a(f"v_mfma_f32_16x16x32_bf16 {SUM[qt]}, {ONE}, {BX[qt]}, 0")
    for qt in (0,1):
        for et in range(8): a(f"v_mfma_f32_16x16x32_bf16 {oacc(qt,et)}, {V.sub(4*et,4)}, {BX[qt]}, 0")
    for qt in (0,1): a(f"v_mfma_f32_16x16x16_bf16 {SUM[qt]}, {ONE.sub(0,2)}, {BM[qt][0]}, {SUM[qt]}")
    for qt in (0,1):
        for et in range(8): a(f"v_mfma_f32_16x16x16_bf16 {oacc(qt,et)}, {VMf.sub(2*(et//2),2)}, {BM[qt][et%2]}, {oacc(qt,et)}")
    a(f"v_rcp_f32 {RC[0]}, {SUM[0][0]}\nv_rcp_f32 {RC[1]}, {SUM[1][0]}")
    a(f"""s_lshl_b32 {sO}, {sSeg}, 18
s_lshr_b32 {sT0}, {sT}, 3
s_lshl_b32 {sT0}, {sT0}, 16
s_add_u32 {sO}, {sO}, {sT0}
s_and_b32 {sT0}, {sT}, 7
s_lshl_b32 {sT0}, {sT0}, 11
s_add_u32 {sO}, {sO}, {sT0}
s_add_u32 {sO}, {sO}, {OB}""")
    for qt in (0,1):
        for p in range(4):
            o=OA.sub(32*qt+8*p,8)
            for i in range(8): a(f"v_mul_f32 {o[i]}, {o[i]}, {RC[qt]}")
            d=Q.sub(16*qt+4*p,4)
            for i in range(4): a(f"v_cvt_pk_bf16_f32 {d[i]}, {o[2*i]}, {o[2*i+1]}")
            a(f"s_add_u32 {sIn}, {sO}, {qt*32768+(p&1)*16384}\nbuffer_store_dwordx4 {d}, {vLin}, {sWS}, {sIn} offen offset:{(p>>1)*1024} sc1")
    a(f"s_add_u32 {sCnt}, {sCnt}, 1\ns_add_u32 {sSeg}, {sSeg}, 4\ns_waitcnt vmcnt(0)")
    a.set_flag(sFlag, sCnt, vt0, vt1)
    a(f"s_cmp_lt_u32 {sCnt}, 16\ns_cbranch_scc1 L_ATT_loop")

def role_mix(a):
    a.label("L_role_MIX")
    sSeg='s40'; sU='s41'; sIn='s42'; sNeed='s43'; sOo='s44'; sNeed2='s45'; sI2='s46'; sMask='s47'
    vLin='v2'; vFa='v3'; vFb='v4'; vt0='v5'; vt1='v6'; vG='v7'; vGo='v8'; vOut='v9'; vg='v10'; vh='v11'
    D=R('v',16,32); ACa=R('v',48,8); ACb=R('v',56,8); PK=R('v',64,4)
    a.srd(sA,'out')
    a.wait_arrived(vt0, vt1)
    a(f"""s_lshl_b32 {sU}, {sT}, 2
s_add_u32 {sU}, {sU}, {sW}
s_lshr_b32 {sSeg}, {sU}, 6
s_and_b32 {sU}, {sU}, 63
v_lshlrev_b32 {vLin}, 4, {vL}
s_lshr_b32 {sT0}, {sU}, 3
v_and_b32 {vt0}, 3, {vL}
v_lshlrev_b32 {vt0}, 3, {vt0}
v_add_u32 {vt0}, {sT0}, {vt0}
v_lshlrev_b32 {vt0}, 7, {vt0}
v_add_u32 {vFa}, {FL(F_WO)}, {vt0}
s_lshl_b32 {sT1}, {sSeg}, 12
s_add_u32 {sT1}, {sT1}, {FL(F_F2)}
v_add_u32 {vFb}, {sT1}, {vt0}
v_and_b32 {vt0}, 15, {vL}
s_bfe_u32 {sT1}, {sU}, 0x10002
s_lshl_b32 {sT1}, {sT1}, 4
v_add_u32 {vt0}, {sT1}, {vt0}
v_lshlrev_b32 {vGo}, 2, {vt0}
v_lshlrev_b32 {vOut}, 11, {vt0}
v_lshrrev_b32 {vt1}, 4, {vL}
v_lshl_add_u32 {vOut}, {vt1}, 4, {vOut}
s_lshl_b32 {sT0}, {sT0}, 8
s_and_b32 {sT1}, {sU}, 3
s_lshl_b32 {sT1}, {sT1}, 6
s_add_u32 {sT0}, {sT0}, {sT1}
v_add_u32 {vOut}, {sT0}, {vOut}
s_mov_b32 {sMask}, 0xffff0000
v_and_b32 {vt0}, 3, {vL}
v_lshlrev_b32 {vt0}, 7, {vt0}
v_add_u32 {vt0}, {FL(F_GATE)}, {vt0}""")
    a.wait_flags(vt0, vt1, 1, sleep=8)
    a.label("L_MIX_loop")
    a(f"s_lshr_b32 {sNeed2}, {sSeg}, 1\ns_add_u32 {sNeed2}, {sNeed2}, 1\ns_add_u32 {sNeed}, {sSeg}, 1")
    a.wait_flags(vFb, vt0, sNeed2, sleep=4)
    a(f"s_lshl_b32 {sIn}, {sSeg}, 18\ns_lshl_b32 {sT0}, {sU}, 10\ns_add_u32 {sIn}, {sIn}, {sT0}")
    for kc in range(4): a(f"s_add_u32 {sI2}, {sIn}, {PB+kc*65536}\nbuffer_load_dwordx4 {D.sub(16+4*kc,4)}, {vLin}, {sWS}, {sI2} offen sc1")
    a(f"s_lshl_b32 {sOo}, {sSeg}, 7\ns_add_u32 {sOo}, {sOo}, {GOFF}\nbuffer_load_dword {vG}, {vGo}, {sWS}, {sOo} offen sc1")
    a.wait_flags(vFa, vt0, sNeed, sleep=2)
    for kc in range(4): a(f"s_add_u32 {sI2}, {sIn}, {PA+kc*65536}\nbuffer_load_dwordx4 {D.sub(4*kc,4)}, {vLin}, {sWS}, {sI2} offen sc1")
    def accum(acc, base):
        for kc in range(4):
            for d in range(4):
                src=D[base+4*kc+d]
                if kc==0: a(f"v_lshlrev_b32 {acc[2*d]}, 16, {src}\nv_and_b32 {acc[2*d+1]}, {sMask}, {src}")
                else: a(f"v_lshlrev_b32 {vt0}, 16, {src}\nv_and_b32 {vt1}, {sMask}, {src}\nv_add_f32 {acc[2*d]}, {acc[2*d]}, {vt0}\nv_add_f32 {acc[2*d+1]}, {acc[2*d+1]}, {vt1}")
    accum(ACb,16)
    a(f"v_lshlrev_b32 {vg}, 16, {vG}\nv_and_b32 {vh}, {sMask}, {vG}")
    for i in range(8): a(f"v_mul_f32 {ACb[i]}, {ACb[i]}, {vh}")
    a("s_waitcnt vmcnt(0)")
    accum(ACa,0)
    for i in range(8): a(f"v_fma_f32 {ACa[i]}, {ACa[i]}, {vg}, {ACb[i]}")
    for i in range(4): a(f"v_cvt_pk_bf16_f32 {PK[i]}, {ACa[2*i]}, {ACa[2*i+1]}")
    a(f"s_lshl_b32 {sOo}, {sSeg}, 16\nbuffer_store_dwordx4 {PK}, {vOut}, {sA}, {sOo} offen")
    a(f"s_add_u32 {sSeg}, {sSeg}, 2\ns_cmp_lt_u32 {sSeg}, 64\ns_cbranch_scc1 L_MIX_loop")

def role_gate(a):
    a.label("L_role_GATE")
    sRow='s40'; sEnd='s41'; sFlag='s42'; sMask='s43'; sGo='s44'
    vLin='v2'; vt0='v3'; vt1='v4'; vt2='v5'; vt3='v6'
    GW=R('v',8,16); X=R('v',24,32); AC=R('v',56,4); RAW=R('v',60,8)
    a(f"s_sub_u32 {sFlag}, {sT}, 28\ns_lshl_b32 {sRow}, {sFlag}, 2\ns_add_u32 {sRow}, {sRow}, {sW}\ns_lshl_b32 {sRow}, {sRow}, 7\ns_lshl_b32 {sFlag}, {sFlag}, 7\ns_add_u32 {sFlag}, {sFlag}, {FL(F_GATE)}")
    a.wave0(lambda: a.set_flag(sFlag, 0, vt0, vt1))
    a("s_waitcnt vmcnt(0)\ns_barrier"); a.arrive(vt0,vt1)
    a.srd(sA,'x'); a.srd(sB,'gw')
    a(f"""v_lshlrev_b32 {vLin}, 4, {vL}
s_mov_b32 {sMask}, 0xffff0000
buffer_load_dwordx4 {RAW.sub(0,4)}, {vLin}, {sB}, 0 offen
buffer_load_dwordx4 {RAW.sub(4,4)}, {vLin}, {sB}, 0 offen offset:1024
s_add_u32 {sEnd}, {sRow}, 128
s_waitcnt vmcnt(0)""")
    for d in range(8): a(f"v_lshlrev_b32 {GW[2*d]}, 16, {RAW[d]}\nv_and_b32 {GW[2*d+1]}, {sMask}, {RAW[d]}")
    a.label("L_GATE_loop")
    for r in range(4):
        a(f"s_add_u32 {sT0}, {sRow}, {r}\ns_lshl_b32 {sT0}, {sT0}, 11\nbuffer_load_dwordx4 {X.sub(8*r,4)}, {vLin}, {sA}, {sT0} offen\nbuffer_load_dwordx4 {X.sub(8*r+4,4)}, {vLin}, {sA}, {sT0} offen offset:1024")
    for r in range(4):
        a(f"s_waitcnt vmcnt({6-2*r})")
        for d in range(8):
            x=X[8*r+d]
            a(f"""v_lshlrev_b32 {vt0}, 16, {x}
v_and_b32 {vt1}, {sMask}, {x}
v_mul_f32 {vt0}, {vt0}, {GW[2*d]}
v_mul_f32 {vt1}, {vt1}, {GW[2*d+1]}
v_cvt_pk_bf16_f32 {vt2}, {vt0}, {vt1}
v_lshlrev_b32 {vt0}, 16, {vt2}
v_and_b32 {vt1}, {sMask}, {vt2}""")
            a(f"v_add_f32 {AC[r]}, {vt0}, {vt1}" if d==0 else f"v_add_f32 {AC[r]}, {AC[r]}, {vt0}\nv_add_f32 {AC[r]}, {AC[r]}, {vt1}")
    for sh in (8,4,2,1):
        for r in range(4): a(f"v_add_f32_dpp {AC[r]}, {AC[r]}, {AC[r]} row_ror:{sh} row_mask:0xf bank_mask:0xf")
    for perm in ('v_permlane16_swap_b32','v_permlane32_swap_b32'):
        for r in range(4): a(f"v_mov_b32 {RAW[r]}, {AC[r]}")
        for r in range(4): a(f"{perm} {AC[r]}, {RAW[r]}")
        for r in range(4): a(f"v_add_f32 {AC[r]}, {AC[r]}, {RAW[r]}")
    a(f"""v_cmp_eq_u32 vcc, 1, {vL}
v_cndmask_b32 {vt0}, {AC[0]}, {AC[1]}, vcc
v_cmp_eq_u32 vcc, 2, {vL}
v_cndmask_b32 {vt0}, {vt0}, {AC[2]}, vcc
v_cmp_eq_u32 vcc, 3, {vL}
v_cndmask_b32 {vt0}, {vt0}, {AC[3]}, vcc
v_cvt_pk_bf16_f32 {vt0}, {vt0}, {vt0}
v_and_b32 {vt0}, {sMask}, {vt0}
v_mul_f32 {vt0}, 0xbfb8aa3b, {vt0}
v_exp_f32 {vt0}, {vt0}
v_add_f32 {vt0}, 1.0, {vt0}
v_rcp_f32 {vt0}, {vt0}
v_cvt_pk_bf16_f32 {vt1}, {vt0}, {vt0}
v_and_b32 {vt1}, {sMask}, {vt1}
v_sub_f32 {vt2}, 1.0, {vt1}
v_cvt_pk_bf16_f32 {vt2}, {vt1}, {vt2}
v_lshlrev_b32 {vt3}, 2, {vL}
s_lshl_b32 {sGo}, {sRow}, 2
s_add_u32 {sGo}, {sGo}, {GOFF}
s_mov_b64 {sEX}, exec
s_mov_b64 exec, 15
buffer_store_dword {vt2}, {vt3}, {sWS}, {sGo} offen sc1
s_mov_b64 exec, {sEX}
s_add_u32 {sRow}, {sRow}, 4
s_cmp_lt_u32 {sRow}, {sEnd}
s_cbranch_scc1 L_GATE_loop
s_waitcnt vmcnt(0)
s_barrier""")
    a.wave0(lambda: a.set_flag(sFlag, 1, vt0, vt1))
```

```python
from common import *
sWoff='s40'; sWs4='s41'; sSeg='s42'; sStep='s43'; sCnt='s44'; sN='s45'; sAoff='s46'; sAstr='s47'; sM0='s48'
sOut0='s49'; sOutRt='s50'; sOstr='s51'; sFlag='s52'; sDone='s53'; sO1='s54'; sNeed='s55'; sAo2='s56'
vWoff='v2'; vTr0='v3'; vTr1='v4'; vAoff='v5'; vRd=['v6','v7']; vOut='v8'; vFl='v9'; vt0='v10'; vt1='v11'; vt2='v12'; vt3='v13'
ACC=R('v',16,16); FR=R('v',32,32); PK=R('v',64,8); TM=R('v',72,16)
NF=8
def Wreg(ks,ct): return R('a',(ks*2+ct)*4,4)

def lane_consts(a, xmode):
    a(f"""v_lshrrev_b32 {vt0}, 4, {vL}
v_and_b32 {vt1}, 15, {vL}
s_lshr_b32 {sT0}, {sWs4}, 2
v_mul_lo_u32 {vWoff}, {vt0}, {sT0}
v_lshlrev_b32 {vt2}, 2, {vt0}
v_xor_b32 {vt2}, {vt2}, {vt1}
v_lshl_add_u32 {vWoff}, {vt2}, 4, {vWoff}
v_bfe_u32 {vt2}, {vL}, 2, 2
v_lshl_add_u32 {vt3}, {vt0}, 3, {vt2}
v_lshlrev_b32 {vTr0}, 8, {vt3}
v_and_b32 {vt3}, 3, {vL}
s_lshl_b32 {sT0}, {sW}, 2
v_add_u32 {vt3}, {sT0}, {vt3}
v_lshlrev_b32 {vt2}, 2, {vt2}
v_xor_b32 {vt3}, {vt3}, {vt2}
v_lshl_add_u32 {vTr0}, {vt3}, 4, {vTr0}
v_add_u32 {vTr1}, 0x10000, {vTr0}
v_lshlrev_b32 {vOut}, 4, {vL}""")
    if xmode:
        a(f"""v_lshrrev_b32 {vt2}, 3, {vL}
v_and_b32 {vt3}, 7, {vL}
v_xor_b32 {vt3}, {vt3}, {vt2}
v_lshlrev_b32 {vAoff}, 11, {vt2}
v_lshl_add_u32 {vAoff}, {vt3}, 4, {vAoff}
v_and_b32 {vt2}, 7, {vL}
v_bfe_u32 {vt3}, {vL}, 3, 1
v_lshlrev_b32 {vRd[0]}, 14, {vt3}
v_lshl_add_u32 {vRd[0]}, {vt2}, 7, {vRd[0]}
v_xor_b32 {vt3}, {vt0}, {vt2}
v_lshl_add_u32 {vRd[0]}, {vt3}, 4, {vRd[0]}
v_xor_b32 {vRd[1]}, 64, {vRd[0]}""")
    else:
        a(f"""v_lshlrev_b32 {vAoff}, 4, {vL}
v_lshlrev_b32 {vRd[0]}, 4, {vL}
v_add_u32 {vRd[1]}, 0x4000, {vRd[0]}""")

def load_w(a, nchunk, after_first=None):
    a(f"s_lshl_b32 {sT0}, {sWs4}, 3\ns_mul_i32 {sT0}, {sT0}, {sW}\ns_add_u32 {sWoff}, {sWoff}, {sT0}\ns_mul_i32 {sT1}, {sWs4}, 24\ns_lshl_b32 {sT2}, {sW}, 13")
    def dma(cc):
        a(f"s_add_u32 m0, {sT2}, {(cc%4)*32768}")
        for n in range(8):
            a(f"s_nop 0\nbuffer_load_dwordx4 {vWoff}, {sB}, {sWoff} offen lds\ns_add_u32 {sWoff}, {sWoff}, {sWs4}")
            if n<7: a("s_add_u32 m0, m0, 1024")
        a(f"s_add_u32 {sWoff}, {sWoff}, {sT1}")
    for cc in range(min(4,nchunk)): dma(cc)
    for cc in range(nchunk):
        later=min(cc+3,nchunk-1)-cc
        a(f"s_waitcnt vmcnt({8*later})\ns_barrier")
        if cc==0 and after_first: after_first()
        buf=(cc%4)*32768; vb=vTr1 if buf>=65536 else vTr0
        for kl in range(4):
            for ct in range(2):
                for jj in range(2):
                    a(f"ds_read_b64_tr_b16 {Wreg(cc*4+kl,ct).sub(2*jj,2)}, {vb} offset:{(buf%65536)+kl*8192+jj*1024+ct*8}")
        a("s_waitcnt lgkmcnt(0)\ns_barrier")
        if cc+4<nchunk: dma(cc+4)

def dma_items(xmode, nch):
    it=[]
    for ch in range(nch):
        if xmode:
            it.append((f"s_mov_b32 m0, {sM0}" if ch==0 else "s_add_u32 m0, m0, 896", f"buffer_load_dwordx4 {vAoff}, {sA}, {sAoff} offen offset:{ch*128} lds"))
        else:
            pre=''
            if ch%4==0: pre=f"s_add_u32 m0, {sM0}, {ch*1024}\ns_add_u32 {sAo2}, {sAoff}, {ch*1024}"
            it.append((pre, f"buffer_load_dwordx4 {vAoff}, {sWS}, {sAo2} offen offset:{(ch%4)*1024} sc1 lds"))
    return it

def mfma_body(a, nch, elane, fillers, chunk_hook=None, ch_range=None, first=True, prime=True):
    q=LgkmQ(a)
    chs=list(ch_range if ch_range is not None else range(nch))
    fr=[(ch,par,rt) for ch in chs for par in range(2) for rt in range(2)]
    def rd(i):
        ch,par,rt=fr[i]
        q.issue(i, f"ds_read_b128 {FR.sub(4*(i%NF),4)}, {vRd[par]} offset:{rt*32768+ch*1024}")
    for i in range(min(NF-1,len(fr))): rd(i)
    fi=0
    for i,(ch,par,rt) in enumerate(fr):
        ks=2*ch+par
        if i%2==0: q.need(i, min(i+1,len(fr)-1))
        f=FR.sub(4*(i%NF),4)
        for ct in range(2):
            acc=ACC.sub(8*rt+4*ct,4); c='0' if (first and ks==2*chs[0]) else acc
            if elane: a(f"v_mfma_f32_16x16x32_bf16 {acc}, {f}, {Wreg(ks,ct)}, {c}")
            else:     a(f"v_mfma_f32_16x16x32_bf16 {acc}, {Wreg(ks,ct)}, {f}, {c}")
            if ct==0:
                if i+NF-1<len(fr): rd(i+NF-1)
            elif fi<len(fillers):
                if fillers[fi]: a(fillers[fi])
                fi+=1
    for f in fillers[fi:]:
        if f: a(f)

def epilogue(a, elane, silu):
    if silu:
        a(f"s_mov_b32 {sT0}, 0xbfb8aa3b")
        for i in range(16): a(f"v_mul_f32 {TM[i]}, {sT0}, {ACC[i]}")
        for i in range(16): a(f"v_exp_f32 {TM[i]}, {TM[i]}")
        for i in range(16): a(f"v_add_f32 {TM[i]}, 1.0, {TM[i]}")
        for i in range(16): a(f"v_rcp_f32 {TM[i]}, {TM[i]}")
        for i in range(16): a(f"v_mul_f32 {ACC[i]}, {ACC[i]}, {TM[i]}")
    for u in range(2):
        for d in range(4):
            if elane: r=8*(d//2)+4*u+2*(d%2)
            else:     r=8*u+2*d
            a(f"v_cvt_pk_bf16_f32 {PK[4*u+d]}, {ACC[r]}, {ACC[r+1]}")
        if u==0: a(f"buffer_store_dwordx4 {PK.sub(0,4)}, {vOut}, {sWS}, {sOut0} offen sc1")
        else:    a(f"s_add_u32 {sO1}, {sOut0}, {sOutRt}\nbuffer_store_dwordx4 {PK.sub(4,4)}, {vOut}, {sWS}, {sO1} offen sc1")

def next_aoff(a):
    a(f"s_add_u32 {sAoff}, {sAoff}, {sAstr}\ns_add_u32 {sT0}, {sCnt}, 1\ns_cmp_lt_u32 {sT0}, {sN}\ns_cselect_b32 {sAoff}, {sAoff}, 0xf0000000")

def free_loop(a, tag, xmode, nch, elane, silu, incheck=None):
    a(f"s_lshl_b32 {sM0}, {sW}, 14\ns_mov_b32 {sCnt}, 0")
    if incheck: incheck(first=True)
    for pre,ld in dma_items(xmode,nch):
        if pre: a(pre)
        a(ld)
    a("s_waitcnt vmcnt(0)")
    a.label(f"L_{tag}_loop")
    a(f"s_waitcnt vmcnt(2)\ns_barrier")
    L=a.newlabel('nf')
    a(f"s_cmp_lt_u32 {sCnt}, 2\ns_cbranch_scc1 {L}\ns_sub_u32 {sT1}, {sCnt}, 1")
    a.wave0(lambda: a.set_flag(sFlag, sT1, vt0, vt1))
    a.label(L)
    next_aoff(a)
    a(f"s_xor_b32 {sM0}, {sM0}, 0x10000")
    if incheck: incheck(first=False)
    fl=[]
    for pre,ld in dma_items(xmode,nch):
        fl.append(pre); fl.append(ld)
    mfma_body(a, nch, elane, fl)
    epilogue(a, elane, silu)
    a(f"""v_xor_b32 {vRd[0]}, 0x10000, {vRd[0]}
v_xor_b32 {vRd[1]}, 0x10000, {vRd[1]}
s_add_u32 {sOut0}, {sOut0}, {sOstr}
s_add_u32 {sSeg}, {sSeg}, {sStep}
s_add_u32 {sCnt}, {sCnt}, 1
s_cmp_lt_u32 {sCnt}, {sN}
s_cbranch_scc1 L_{tag}_loop
s_waitcnt vmcnt(0)
s_barrier""")
    a.wave0(lambda: a.set_flag(sFlag, sN, vt0, vt1))

def f2_incheck(a):
    def chk(first):
        L=a.newlabel('ic');
        if first:
            a(f"s_mov_b32 {sDone}, 0\ns_add_u32 {sNeed}, {sSeg}, 1")
        else:
            a(f"s_add_u32 {sNeed}, {sSeg}, {sStep}\ns_add_u32 {sNeed}, {sNeed}, 1\ns_min_u32 {sNeed}, {sNeed}, 64\ns_cmp_lg_u32 {sDone}, 0\ns_cbranch_scc1 {L}")
        a.wait_flags(vFl, vt2, sNeed)
        a(f"v_cmp_gt_u32 vcc, 64, {vt2}\ns_cbranch_vccnz {L}\ns_mov_b32 {sDone}, 1")
        a.label(L)
    return chk

def clear_flags(a, idxs):
    def body():
        for b in idxs:
            a(f"s_lshl_b32 {sT0}, {sT}, 7\ns_add_u32 {sT0}, {sT0}, {FL(b)}")
            a.set_flag(sT0, 0, vt0, vt1)
    a.wave0(body)

def role_x(a, tag, kind):
    a.label(f"L_role_{tag}")
    if kind=='KQ':
        a(f"""s_cmp_eq_u32 {sX}, 2
s_cselect_b32 {sT0}, {KA['Wk']}, {KA['Wq']}
s_mov_b32 {sOut0}, {QX}
s_cselect_b32 {sOut0}, {KX}, {sOut0}
s_cselect_b32 {sFlag}, {FL(F_K)}, {FL(F_Q)}
s_load_dwordx2 s[4:5], s[0:1], {sT0}
s_waitcnt lgkmcnt(0)
s_mov_b32 s20, s4
s_mov_b32 s21, s5
s_mov_b32 s22, {SZ['Wk']}
s_mov_b32 s23, 0x20000""")
        a(f"s_lshl_b32 {sT0}, {sT}, 7\ns_add_u32 {sFlag}, {sFlag}, {sT0}")
        a.wave0(lambda: a.set_flag(sFlag, 0, vt0, vt1))
        L=a.newlabel('kq'); a(f"s_cmp_lg_u32 {sX}, 2\ns_cbranch_scc1 {L}"); clear_flags(a,[F_F2]); a.label(L)
        a(f"s_mov_b32 {sWs4}, {4*8192}\ns_lshl_b32 {sT0}, {sT}, 13\ns_lshl_b32 {sT1}, {sW}, 10\ns_add_u32 {sOut0}, {sOut0}, {sT0}\ns_add_u32 {sOut0}, {sOut0}, {sT1}\ns_mov_b32 {sOutRt}, 4096")
    elif kind=='V':
        a.srd(sB,'Wv'); clear_flags(a,[F_V,F_F2+32])
        a(f"s_lshl_b32 {sFlag}, {sT}, 7\ns_add_u32 {sFlag}, {sFlag}, {FL(F_V)}\ns_mov_b32 {sWs4}, {4*8192}\ns_lshl_b32 {sT0}, {sT}, 13\ns_lshl_b32 {sT1}, {sW}, 11\ns_add_u32 {sOut0}, {sT0}, {sT1}\ns_add_u32 {sOut0}, {sOut0}, {VX}\ns_mov_b32 {sOutRt}, 1024")
    else:
        a.srd(sB,'w1'); clear_flags(a,[F_F1])
        a(f"""s_lshl_b32 {sFlag}, {sT}, 7
s_add_u32 {sFlag}, {sFlag}, {FL(F_F1)}
s_mov_b32 {sWs4}, {4*7168}
s_mul_i32 {sT0}, {sT}, 37
s_lshr_b32 {sT0}, {sT0}, 8
s_mul_i32 {sT1}, {sT0}, 7
s_sub_u32 {sT1}, {sT}, {sT1}
s_lshl_b32 {sOut0}, {sT0}, 16
s_lshl_b32 {sT1}, {sT1}, 11
s_add_u32 {sOut0}, {sOut0}, {sT1}
s_and_b32 {sT1}, {sW}, 1
s_lshl_b32 {sT1}, {sT1}, 14
s_add_u32 {sOut0}, {sOut0}, {sT1}
s_lshr_b32 {sT1}, {sW}, 1
s_lshl_b32 {sT1}, {sT1}, 10
s_add_u32 {sOut0}, {sOut0}, {sT1}
s_add_u32 {sOut0}, {sOut0}, {HB}
s_mov_b32 {sOutRt}, 32768""")
    a.srd(sA,'x')
    lane_consts(a, True)
    a(f"s_lshl_b32 {sWoff}, {sT}, 8")
    load_w(a, 8, after_first=lambda: a.arrive(vt0,vt1))
    a(f"s_lshl_b32 {sAoff}, {sW}, 14\ns_mov_b32 {sAstr}, 65536\ns_mov_b32 {sOstr}, {SEGSTR}\ns_mov_b32 {sN}, 64\ns_mov_b32 {sSeg}, 0\ns_mov_b32 {sStep}, 1")
    free_loop(a, tag, True, 16, kind=='V', kind=='F1')

def role_f2(a):
    a.label("L_role_F2")
    a.srd(sB,'w2')
    a(f"""s_sub_u32 {sSeg}, {sX}, 2
s_lshl_b32 {sFlag}, {sSeg}, 5
s_add_u32 {sFlag}, {sFlag}, {sT}
s_lshl_b32 {sFlag}, {sFlag}, 7
s_add_u32 {sFlag}, {sFlag}, {FL(F_F2)}
s_mov_b32 {sWs4}, {4*2048}
s_lshr_b32 {sT0}, {sT}, 3
s_and_b32 {sT1}, {sT}, 7
s_mul_i32 {sWoff}, {sT0}, {896*2048}
s_lshl_b32 {sT1}, {sT1}, 8
s_add_u32 {sWoff}, {sWoff}, {sT1}
s_lshl_b32 {sAoff}, {sT0}, 16
s_lshl_b32 {sT1}, {sW}, 14
s_add_u32 {sAoff}, {sAoff}, {sT1}
s_lshl_b32 {sT1}, {sSeg}, 18
s_add_u32 {sAoff}, {sAoff}, {sT1}
s_add_u32 {sAoff}, {sAoff}, {HB}
s_lshl_b32 {sOut0}, {sT}, 13
s_add_u32 {sOut0}, {sOut0}, {sT1}
s_lshl_b32 {sT1}, {sW}, 10
s_add_u32 {sOut0}, {sOut0}, {sT1}
s_add_u32 {sOut0}, {sOut0}, {PB}
s_mov_b32 {sOutRt}, 4096
s_mov_b32 {sAstr}, {2*SEGSTR}
s_mov_b32 {sOstr}, {2*SEGSTR}
s_mov_b32 {sN}, 32
s_mov_b32 {sStep}, 2
s_mul_i32 {sT0}, {sT0}, 7
v_min_u32 {vFl}, 6, {vL}
v_add_u32 {vFl}, {sT0}, {vFl}
v_lshlrev_b32 {vFl}, 7, {vFl}
v_add_u32 {vFl}, {FL(F_F1)}, {vFl}""")
    lane_consts(a, False)
    load_w(a, 7)
    a.wait_arrived(vt0, vt1)
    free_loop(a, 'F2', False, 14, False, False, incheck=f2_incheck(a))

def role_wo(a):
    a.label("L_role_WO")
    a.srd(sB,'Wo'); clear_flags(a,[F_WO])
    a(f"""s_lshl_b32 {sFlag}, {sT}, 7
s_add_u32 {sFlag}, {sFlag}, {FL(F_WO)}
s_mov_b32 {sWs4}, {4*2048}
s_lshr_b32 {sT0}, {sT}, 3
s_and_b32 {sT1}, {sT}, 7
s_lshl_b32 {sWoff}, {sT0}, 21
s_lshl_b32 {sT1}, {sT1}, 8
s_add_u32 {sWoff}, {sWoff}, {sT1}
s_lshl_b32 {sAoff}, {sT0}, 16
s_lshl_b32 {sT1}, {sW}, 14
s_add_u32 {sAoff}, {sAoff}, {sT1}
s_add_u32 {sAoff}, {sAoff}, {OB}
s_lshl_b32 {sOut0}, {sT}, 13
s_lshl_b32 {sT1}, {sW}, 10
s_add_u32 {sOut0}, {sOut0}, {sT1}
s_add_u32 {sOut0}, {sOut0}, {PA}
s_mov_b32 {sOutRt}, 4096
s_lshl_b32 {sT0}, {sT0}, 3
v_and_b32 {vFl}, 7, {vL}
v_add_u32 {vFl}, {sT0}, {vFl}
v_lshlrev_b32 {vFl}, 7, {vFl}
v_add_u32 {vFl}, {FL(F_ATT)}, {vFl}""")
    lane_consts(a, False)
    load_w(a, 8, after_first=lambda: a.arrive(vt0,vt1))
    a.wait_arrived(vt0, vt1)
    a(f"s_lshl_b32 {sM0}, {sW}, 14\ns_mov_b32 {sCnt}, 0")
    a.label("L_WO_loop")
    a(f"s_and_b32 {sT0}, {sCnt}, 3\ns_lshl_b32 {sAo2}, {sT0}, 12\ns_lshr_b32 {sNeed}, {sCnt}, 2\ns_add_u32 {sNeed}, {sNeed}, 1")
    a.wait_flags(vFl, vt2, sNeed, sleep=1, soff=sAo2)
    for pre,ld in dma_items(False,16):
        if pre: a(pre)
        a(ld)
    for qd in range(4):
        a(f"s_waitcnt vmcnt({12-4*qd})\ns_barrier")
        mfma_body(a, 16, False, [], ch_range=range(4*qd,4*qd+4), first=(qd==0))
    epilogue(a, False, False)
    a(f"""s_add_u32 {sCnt}, {sCnt}, 1
s_add_u32 {sAoff}, {sAoff}, {SEGSTR}
s_add_u32 {sOut0}, {sOut0}, {SEGSTR}
s_waitcnt vmcnt(0)
s_barrier""")
    a.wave0(lambda: a.set_flag(sFlag, sCnt, vt0, vt1))
    a(f"s_cmp_lt_u32 {sCnt}, 64\ns_cbranch_scc1 L_WO_loop")
```

```python
import sys
from common import *
import stream, misc_roles, chain, hazard
def build(ST=False, roles=None, cyc=False):
    a=G(); a.stamp_step='s43'; a.stamp_op='s_memtime' if cyc else 's_memrealtime'
    prologue(a, None)
    on=lambda r: roles is None or r in roles
    def go(name, cond): return f"L_role_{name}" if cond else "L_end"
    a(f"""s_cmp_lt_u32 {sX}, 2
s_cbranch_scc0 L_bulk
s_cmp_lt_u32 {sT}, 16
s_cbranch_scc1 L_j_QK
s_branch L_j_VO
L_bulk:
s_cmp_eq_u32 {sX}, 3
s_cbranch_scc1 L_j_V
s_cmp_eq_u32 {sX}, 6
s_cbranch_scc1 L_j_WO
s_cmp_eq_u32 {sX}, 7
s_cbranch_scc1 L_j_ATT
s_cmp_eq_u32 {sX}, 5
s_cbranch_scc0 L_role_KQ
s_cmp_lt_u32 {sT}, 28
s_cbranch_scc1 L_j_F1
s_branch L_role_GATE
L_j_QK:
s_branch L_role_QK
L_j_VO:
s_branch L_role_VO
L_j_V:
s_branch L_role_V
L_j_WO:
s_branch L_role_WO
L_j_ATT:
s_branch L_role_ATT
L_j_F1:
s_branch L_role_F1
L_end:
s_endpgm""")
    stream.role_x(a,'KQ','KQ')
    a(f"s_cmp_eq_u32 {sX}, 2\ns_cbranch_scc1 L_role_F2\ns_branch L_role_MIX")
    stream.role_x(a,'V','V')
    stream.role_f2(a); a("s_endpgm")
    stream.role_x(a,'F1','F1'); a("s_endpgm")
    stream.role_wo(a); a("s_endpgm")
    misc_roles.role_att(a); a("s_endpgm")
    misc_roles.role_mix(a); a("s_endpgm")
    misc_roles.role_gate(a); a("s_endpgm")
    chain.role_qk(a, ST)
    chain.role_vo(a, ST)
    rep=[]
    body=hazard.fix(a.text(), report=rep)
    return body, rep
HEADER=["Gated mix of a recurrent-memory attention branch and a SiLU FFN branch, one persistent launch.",
 "Kernarg (pointers): x 0, mem0 8, Wq 16, Wk 24, Wv 32, Wo 40, seg_len 48, B_x 56, w1 64, w2 72, gate_w 80, out 88, debug 96, ws 104.",
 "One workgroup per CU; the role comes from the die id and a ticket. Dies 0,1 run the 64-step memory recurrence with",
 "weights resident in registers/LDS; the other dies stream the projections, FFN, x-row attention and the final mix."]
if __name__=='__main__':
    out=sys.argv[1] if len(sys.argv)>1 else 'k.s'
    body,rep=build(ST=('st' in sys.argv[2:]), cyc=('cyc' in sys.argv[2:]))
    open(out,'w').write(wrap(body, HEADER, 163840))
    print(len(body.split('\n')),'lines;',len(rep),'nops inserted')
```
